```python
import torch

def _softmax(x, axis=-1):
    return torch.softmax(x, dim=axis)
def _gelu(x):
    return torch.nn.functional.gelu(x, approximate="tanh")
def _silu(x):
    return torch.nn.functional.silu(x)
def _sigmoid(x):
    return torch.sigmoid(x)
def _layernorm(x, axis=-1, eps=1e-5):
    m = x.mean(dim=axis, keepdim=True)
    v = x.var(dim=axis, keepdim=True, unbiased=False)
    return (x - m) / torch.sqrt(v + eps)
def _scatter_add(tgt, idx, src, axis=0):
    return tgt.clone().index_add_(axis, idx, src)
def _segment_sum(src, seg, n):
    out = torch.zeros((n,) + src.shape[1:], dtype=src.dtype)
    return out.index_add_(0, seg, src)
def _pad(x, pw):
    flat = tuple(v for pair in reversed(pw) for v in pair)
    return torch.nn.functional.pad(x, flat)

kernel_name = 'sequential_preLN__ssm_conv_s4__moe_arch_mod__prompt'

def setup_inputs():

    _w = (lambda a: (lambda t: t.to(torch.bfloat16) if t.is_floating_point() else t)(torch.as_tensor(a)))
    def _A_setup():
        B, L, D, N = 1, 2048, 640, 192
        A_re = -(lambda _x: torch.exp(torch.as_tensor(_x)))((lambda *s: torch.randn(*s, dtype=torch.bfloat16) * 6.4)(D, N))
        A_im = torch.pi * (lambda *s: torch.randn(*s, dtype=torch.bfloat16) * 0.05)(D, N)
        B_re = (lambda *s: torch.randn(*s, dtype=torch.bfloat16) * 0.05)(D, N)
        B_im = (lambda *s: torch.randn(*s, dtype=torch.bfloat16) * 0.05)(D, N)
        C_re = (lambda *s: torch.randn(*s, dtype=torch.bfloat16) * 0.05)(D, N)
        C_im = (lambda *s: torch.randn(*s, dtype=torch.bfloat16) * 0.05)(D, N)
        log_dt = (lambda *s: torch.randn(*s, dtype=torch.bfloat16) * 0.05)(D) * 0.5 - 4.0
        Dskip = (lambda *s: torch.randn(*s, dtype=torch.bfloat16) * 0.05)(D)
        return {
            "u": _w((lambda *s: torch.randn(*s, dtype=torch.bfloat16) * 0.05)(B, L, D)),
            "A_re": _w(A_re),
            "A_im": _w(A_im),
            "B_re": _w(B_re),
            "B_im": _w(B_im),
            "C_re": _w(C_re),
            "C_im": _w(C_im),
            "log_dt": _w(log_dt),
            "Dskip": _w(Dskip),
        }
    _A_in = _A_setup()

    def _B_setup():
        B, S, D, F, C = 1, 2048, 640, 1536, 1
        return {
            "x": _w((lambda *s: torch.randn(*s, dtype=torch.bfloat16) * 0.05)(B, S, D)),
            "w_r": _w((lambda *s: torch.randn(*s, dtype=torch.bfloat16) * 0.05)(D)),
            "w_gate": _w((lambda *s: torch.randn(*s, dtype=torch.bfloat16) * 0.05)(D, F)),
            "w_up": _w((lambda *s: torch.randn(*s, dtype=torch.bfloat16) * 0.05)(D, F)),
            "w_down": _w((lambda *s: torch.randn(*s, dtype=torch.bfloat16) * 0.05)(F, D)),
        }
    _B_in = _B_setup()

    return {
        "A_u": _A_in["u"],
        "A_A_re": _A_in["A_re"],
        "A_A_im": _A_in["A_im"],
        "A_B_re": _A_in["B_re"],
        "A_B_im": _A_in["B_im"],
        "A_C_re": _A_in["C_re"],
        "A_C_im": _A_in["C_im"],
        "A_log_dt": _A_in["log_dt"],
        "A_Dskip": _A_in["Dskip"],
        "B_x": _B_in["x"],
        "B_w_r": _B_in["w_r"],
        "B_w_gate": _B_in["w_gate"],
        "B_w_up": _B_in["w_up"],
        "B_w_down": _B_in["w_down"],
    }

def reference(A_u, A_A_re, A_A_im, A_B_re, A_B_im, A_C_re, A_C_im, A_log_dt, A_Dskip, B_x, B_w_r, B_w_gate, B_w_up, B_w_down):
    def _A_ref(u, A_re, A_im, B_re, B_im, C_re, C_im, log_dt, Dskip):
        Bsz, L, D = u.shape
        dt = torch.exp(log_dt)[:, None]
        A = A_re + 1j * A_im
        Bc = B_re + 1j * B_im
        Cc = C_re + 1j * C_im
        logdA = dt * A
        dB = dt * Bc
        l = (lambda x, dt: x.to(dt))(torch.arange(L), A_re.dtype)
        P = torch.exp(logdA[:, :, None] * l[None, None, :])
        K = torch.einsum("dn,dnl,dn->dl", Cc, P, dB).real
        L2 = 2 * L
        Kp = _pad(K, ((0, 0), (0, L)))
        up = (lambda x, *d: x.permute(*d))(u, 0, 2, 1)
        up = _pad(up, ((0, 0), (0, 0), (0, L)))
        Kf = (lambda x, axes=(-2,-1): torch.fft.rfft2(x.float(), dim=axes))(Kp[:, None, :], axes=(-2, -1))
        Uf = (lambda x, axes=(-2,-1): torch.fft.rfft2(x.float(), dim=axes))(up[:, :, None, :], axes=(-2, -1))
        Yf = Uf * Kf[None, :, :, :]
        y = (lambda x, s, axes=(-2,-1): torch.fft.irfft2(x, s=s, dim=axes).to(torch.bfloat16))(Yf, (1, L2), axes=(-2, -1))[:, :, 0, :L]
        y = (lambda x, *d: x.permute(*d))(y, 0, 2, 1) + u * Dskip[None, None, :]
        return y

    def _B_ref(x, w_r, w_gate, w_up, w_down):
        B, S, D = x.shape
        C = 1
        r = x @ w_r
        idx = torch.argsort(-r, axis=-1)[:, :C]
        idx_e = (lambda x, n, axis: torch.repeat_interleave(x, n, dim=axis))(idx.reshape(B, C, 1), D, axis=2)
        x_sel = (lambda x, i, axis: torch.take_along_dim(x, i, dim=axis))(x, idx_e, axis=1)
        g = _silu(x_sel @ w_gate)
        u = x_sel @ w_up
        y = (g * u) @ w_down
        r_sel = _sigmoid((lambda x, i, axis: torch.take_along_dim(x, i, dim=axis))(r, idx, axis=1))
        y = y * r_sel.reshape(B, C, 1)
        b_off = (torch.arange(B) * S).reshape(B, 1)
        flat_idx = (idx + b_off).reshape(B * C)
        zero = (x * 0.0).reshape(B * S, D)
        upd = _scatter_add(zero, flat_idx, y.reshape(B * C, D), axis=0)
        return x + upd.reshape(B, S, D)

    x = A_u
    h = x + _A_ref(_layernorm(x, axis=-1), A_A_re, A_A_im, A_B_re, A_B_im, A_C_re, A_C_im, A_log_dt, A_Dskip)
    h2 = h + _B_ref(_layernorm(h, axis=-1), B_w_r, B_w_gate, B_w_up, B_w_down)
    return h2
```

```python
import re

TRANS = ("v_exp_f32","v_log_f32","v_rcp_f32","v_rsq_f32","v_sqrt_f32","v_sin_f32","v_cos_f32","v_rcp_iflag_f32")

def parse_regs(tok):
    tok = tok.strip()
    out = set()
    t = tok.replace("-", "").replace("abs(", "").replace(")", "").replace("|", "")
    m = re.fullmatch(r"([vsa])\[(\d+):(\d+)\]", t)
    if m:
        for i in range(int(m.group(2)), int(m.group(3)) + 1):
            out.add((m.group(1), i))
        return out
    m = re.fullmatch(r"([vsa])(\d+)", t)
    if m:
        out.add((m.group(1), int(m.group(2)))); return out
    if t in ("vcc", "vcc_lo", "vcc_hi"): out.add(("vcc", 0))
    if t in ("exec", "exec_lo", "exec_hi"): out.add(("exec", 0))
    if t == "m0": out.add(("m0", 0))
    return out

class Ins:
    def __init__(self, text):
        self.text = text
        body = text.split(";")[0].strip()
        parts = body.split(None, 1)
        self.op = parts[0]
        rest = parts[1] if len(parts) > 1 else ""
        ops = [o.strip() for o in rest.split(",")] if rest else []
        self.mods = ""
        if ops:
            last = ops[-1].split(None, 1)
            ops[-1] = last[0]
            self.mods = last[1] if len(last) > 1 else ""
        self.ops = ops
        op = self.op
        self.is_mfma = op.startswith("v_mfma")
        self.is_valu = op.startswith("v_") and not self.is_mfma
        self.is_trans = op.replace("_e32","").replace("_e64","") in TRANS
        self.is_salu = op.startswith("s_")
        self.is_vmem = op.startswith(("buffer_", "global_", "flat_"))
        self.is_ds = op.startswith("ds_")
        self.is_dpp = "_dpp" in op or "row_" in self.mods or "quad_perm" in self.mods
        self.is_store = self.is_vmem and ("store" in op or ("atomic" in op))
        self.wide_store = self.is_vmem and "store" in op and ("x3" in op or "x4" in op)
        self.writes = set(); self.reads = set()
        regs = [parse_regs(o) for o in ops]
        if op in ("s_nop", "s_waitcnt", "s_barrier", "s_endpgm", "s_branch", "s_setprio", "s_sleep") or op.startswith("s_cbranch"):
            pass
        elif self.is_vmem:
            if "store" in op or ("atomic" in op and "sc0" not in self.mods) or op in ("buffer_wbl2","buffer_inv"):
                for r in regs: self.reads |= r
            else:
                self.writes |= regs[0]
                for r in regs[1:]: self.reads |= r
            if " lds" in (" " + self.mods):
                self.reads |= self.writes; self.writes = set(); self.reads.add(("m0",0))
        elif self.is_ds:
            if op.startswith(("ds_write", "ds_add", "ds_max", "ds_min")) and "rtn" not in op:
                for r in regs: self.reads |= r
            else:
                self.writes |= regs[0]
                for r in regs[1:]: self.reads |= r
        elif op.startswith("s_cmp"):
            for r in regs: self.reads |= r
        else:
            if regs:
                self.writes |= regs[0]
                start = 1
                if op.startswith(("v_add_co", "v_addc_co", "v_sub_co", "v_subb_co", "v_div_scale", "v_mad_u64")):
                    self.writes |= regs[1]; start = 2
                for r in regs[start:]: self.reads |= r
            if op.startswith(("v_fmac", "v_mac", "v_dot2c", "v_pk_fmac")) or self.is_dpp: self.reads |= regs[0]
            if op.startswith("v_cndmask") and len(ops) == 3: self.reads.add(("vcc", 0))
            if op.startswith(("v_writelane",)): self.reads |= regs[0]
            if "saveexec" in op: self.writes.add(("exec", 0)); self.reads.add(("exec",0))
        if self.is_mfma:
            self.D = regs[0]; self.A = regs[1]; self.B = regs[2]; self.C = regs[3]
            if "_f32_16x16x4_f32" in op: self.kind, self.passes = "S", 8
            elif "_f32_32x32x2_f32" in op: self.kind, self.passes = "S", 16
            elif "16x16x32" in op or "16x16x16" in op: self.kind, self.passes = "X", 4
            elif "32x32x16" in op or "32x32x8" in op: self.kind, self.passes = "X", 8
            else: raise ValueError("unknown mfma " + op)
    def states(self):
        if self.op == "s_nop": return int(self.ops[0], 0) + 1
        return 1

def need(P, I):
    n = 0
    vw = {r for r in P.writes if r[0] in "va"}
    sw = {r for r in P.writes if r[0] in ("s", "vcc")}
    if P.is_valu:
        if I.is_mfma and (vw & I.reads): n = max(n, 2)
        if P.is_trans and I.is_valu and not I.is_trans and (vw & I.reads): n = max(n, 1)
        if I.is_dpp and (vw & I.reads): n = max(n, 2)
        if I.op.startswith(("v_readlane", "v_readfirstlane")) and (vw & I.reads): n = max(n, 1)
        if I.op.startswith("v_permlane") and (vw & I.reads): n = max(n, 2)
        if sw:
            if (I.is_valu or I.is_mfma) and (sw & I.reads): n = max(n, 4 if I.op.startswith(("v_readlane","v_writelane")) else 2)
            if I.is_vmem and (sw & I.reads): n = max(n, 5)
            if I.is_salu and (sw & I.reads): n = max(n, 1)
            if I.is_ds and (sw & I.reads): n = max(n, 5)
        if "sdwa" in P.op or ("op_sel" in P.mods and not P.op.startswith("v_pk_")):
            if (I.is_valu) and (vw & (I.reads | I.writes)): n = max(n, 1)
    if P.is_mfma:
        D = P.writes
        if I.is_mfma:
            if D & (I.A | I.B): n = max(n, {"X": {4: 8, 8: 12}, "S": {8: 10, 16: 18}}[P.kind][P.passes])
            if D & I.C:
                if I.C == D and I.op == P.op: pass
                else: n = max(n, {"X": {4: 6, 8: 10}, "S": {8: 8, 16: 16}}[P.kind][P.passes])
            elif D & I.writes:
                n = max(n, {"X": {4: 8, 8: 12}, "S": {8: 10, 16: 18}}[P.kind][P.passes])
        elif (I.is_valu or I.is_vmem or I.is_ds) and (D & (I.reads | I.writes)):
            n = max(n, {"X": {4: 8, 8: 12}, "S": {8: 10, 16: 18}}[P.kind][P.passes])
        if P.kind == "X" and I.is_valu and (P.C & I.writes): n = max(n, {4: 3, 8: 7}[P.passes])
    if P.wide_store and (I.is_valu or I.is_vmem or I.is_ds or I.is_mfma):
        data = {r for r in P.reads if r[0] == "v"}
        if data & I.writes: n = max(n, 2)
    if P.is_salu and ("m0", 0) in P.writes and ("m0", 0) in I.reads: n = max(n, 1)
    return n

class Asm:
    def __init__(self):
        self.lines = []
        self.win = []
    def raw(self, text):
        self.lines.append(text)
    def label(self, name):
        self.lines.append(name + ":")
    def flush(self, n=12):
        self.lines.append(f"  s_nop {min(n,15)}")
        self.win = []
    def __call__(self, text):
        for line in text.strip().split("\n"):
            line = line.strip()
            if not line or line.startswith(";"):
                continue
            if line.endswith(":"):
                self.label(line[:-1]); continue
            I = Ins(line)
            dist = 0; pad = 0
            for P in reversed(self.win):
                k = need(P, I)
                if k > dist: pad = max(pad, k - dist)
                dist += P.states()
                if dist > 20: break
            while pad > 0:
                c = min(pad, 16)
                nop = Ins(f"s_nop {c-1}")
                self.lines.append(f"  s_nop {c-1}")
                self.win.append(nop); pad -= c
            self.lines.append("  " + line)
            self.win.append(I)
            if len(self.win) > 40: self.win = self.win[-40:]
    def text(self):
        return "\n".join(self.lines) + "\n"

def kd(name, vgpr, sgpr=102):
    acc = (vgpr + 3) // 4 * 4
    return f""".p2align 6
.amdhsa_kernel {name}
  .amdhsa_next_free_vgpr {vgpr}
  .amdhsa_next_free_sgpr {sgpr}
  .amdhsa_accum_offset {acc}
  .amdhsa_group_segment_fixed_size 0
  .amdhsa_kernarg_size 136
  .amdhsa_user_sgpr_count 2
  .amdhsa_user_sgpr_kernarg_segment_ptr 1
  .amdhsa_system_sgpr_workgroup_id_x 1
.end_amdhsa_kernel
"""
```

```python
import sys, struct
sys.path.insert(0, "gen")
from asmlib import Asm, kd
from stamp import Stamper
import os
STAMP = os.environ.get('STAMP','') != ''

UT_OFF = 0
KR_OFF = 4 << 20
KR_STRIDE = 8448
KR2 = 4224
KS_OFF = 12 << 20
VT_OFF = 0x2A0000
KEY_OFF = 0x540000
CAND_OFF = 0x541000
WIN_OFF = 22 << 20
PART_OFF = 0x600000

def f2u(x): return struct.unpack("<I", struct.pack("<f", x))[0]
def hx(x): return "0x%08x" % (x & 0xffffffff)

def wave_id(a, sreg, tmp="v63"):
    a(f"""v_lshrrev_b32 {tmp}, 6, v0
    v_readfirstlane_b32 {sreg}, {tmp}""")

def ws_ptr(a, dst, src, off):
    a(f"""s_add_u32 s{dst}, s{src}, {hx(off)}
    s_addc_u32 s{dst+1}, s{src+1}, 0""")

def dpp_reduce(a, regs, op="v_add_f32", full=True):
    for sh in (1, 2, 4, 8):
        for r in regs:
            a(f"{op}_dpp v{r}, v{r}, v{r} row_shr:{sh} row_mask:0xf bank_mask:0xf bound_ctrl:0")
    for r in regs:
        a(f"{op}_dpp v{r}, v{r}, v{r} row_bcast:15 row_mask:0xa bank_mask:0xf")
    if full:
        for r in regs:
            a(f"{op}_dpp v{r}, v{r}, v{r} row_bcast:31 row_mask:0xc bank_mask:0xf")

def cross_wave_sum8(a, S, lds_off, vres, vtmp, s_wave, vlane, nw=5):
    dpp_reduce(a, list(range(S, S + 8)))
    a(f"""s_lshl_b32 s9, {s_wave}, 5
    v_mov_b32 v{vtmp}, s9
    s_mov_b32 exec_lo, 0
    s_mov_b32 exec_hi, 0x80000000
    ds_write_b128 v{vtmp}, v[{S}:{S+3}] offset:{lds_off}
    ds_write_b128 v{vtmp}, v[{S+4}:{S+7}] offset:{lds_off+16}
    s_mov_b64 exec, -1
    s_waitcnt lgkmcnt(0)
    s_barrier
    v_and_b32 v{vtmp}, 7, {vlane}
    v_lshlrev_b32 v{vtmp}, 2, v{vtmp}""")
    for w in range(nw):
        a(f"ds_read_b32 v{S+w}, v{vtmp} offset:{lds_off+32*w}")
    a("s_waitcnt lgkmcnt(0)")
    a(f"v_add_f32 v{vres}, v{S}, v{S+1}")
    for w in range(2, nw):
        a(f"v_add_f32 v{vres}, v{vres}, v{S+w}")

def rne_bf16_1(a, dst, src):
    a(f"""v_cvt_pk_bf16_f32 v{dst}, v{src}, v{src}
    v_lshlrev_b32 v{dst}, 16, v{dst}""")

def ln_block(a, X, S, T, s_wave, vlane, lds0):
    for t in range(8):
        a(f"v_add_f32 v{S+t}, v{X+2*t}, v{X+2*t+1}")
    cross_wave_sum8(a, S, lds0, T, T + 1, s_wave, vlane)
    a(f"v_mul_f32 v{T}, {hx(f2u(1.0/640))}, v{T}")
    for t in range(8):
        a(f"v_readlane_b32 s{16+t}, v{T}, {t}")
    for t in range(8):
        a(f"""v_subrev_f32 v{T+2}, s{16+t}, v{X+2*t}
        v_subrev_f32 v{T+3}, s{16+t}, v{X+2*t+1}
        v_mul_f32 v{S+t}, v{T+2}, v{T+2}
        v_fmac_f32 v{S+t}, v{T+3}, v{T+3}""")
    cross_wave_sum8(a, S, lds0 + 256, T + 4, T + 1, s_wave, vlane)
    a(f"v_mul_f32 v{T+4}, {hx(f2u(1.0/640))}, v{T+4}")
    rne_bf16_1(a, T, T)
    rne_bf16_1(a, T + 4, T + 4)
    a(f"v_add_f32 v{T+4}, {hx(f2u(1e-5))}, v{T+4}")
    rne_bf16_1(a, T + 4, T + 4)
    a(f"v_sqrt_f32 v{T+4}, v{T+4}")
    rne_bf16_1(a, T + 4, T + 4)
    a(f"v_rcp_f32 v{T+5}, v{T+4}")
    for t in range(8):
        a(f"v_readlane_b32 s{24+t}, v{T}, {t}")
    for t in range(8):
        a(f"v_readlane_b32 s{32+t}, v{T+4}, {t}")
    for t in range(8):
        a(f"v_readlane_b32 s{40+t}, v{T+5}, {t}")
    for t in range(8):
        x0, x1 = X + 2 * t, X + 2 * t + 1
        a(f"""v_subrev_f32 v{x0}, s{24+t}, v{x0}
        v_subrev_f32 v{x1}, s{24+t}, v{x1}
        v_cvt_pk_bf16_f32 v{T}, v{x0}, v{x1}
        v_lshlrev_b32 v{x0}, 16, v{T}
        v_and_b32 v{x1}, 0xffff0000, v{T}
        v_mul_f32 v{T+1}, s{40+t}, v{x0}
        v_mul_f32 v{T+2}, s{40+t}, v{x1}
        v_fma_f32 v{T+3}, -v{T+1}, s{32+t}, v{x0}
        v_fma_f32 v{T+4}, -v{T+2}, s{32+t}, v{x1}
        v_fmac_f32 v{T+1}, s{40+t}, v{T+3}
        v_fmac_f32 v{T+2}, s{40+t}, v{T+4}
        v_cvt_pk_bf16_f32 v{T}, v{T+1}, v{T+2}
        v_lshlrev_b32 v{x0}, 16, v{T}
        v_and_b32 v{x1}, 0xffff0000, v{T}""")

def cmul(a, zr, zi, xr, xi, yr, yi, t):
    a(f"""v_mul_f32 v{t}, v{xi}, v{yi}
    v_mul_f32 v{t+1}, v{xi}, v{yr}
    v_fma_f32 v{t}, v{xr}, v{yr}, -v{t}
    v_fma_f32 v{zi}, v{xr}, v{yi}, v{t+1}
    v_mov_b32 v{zr}, v{t}""") if (zr in (xr, xi, yr, yi) or zi in (xr, yi)) else a(f"""v_mul_f32 v{t}, v{xi}, v{yi}
    v_mul_f32 v{t+1}, v{xi}, v{yr}
    v_fma_f32 v{zr}, v{xr}, v{yr}, -v{t}
    v_fma_f32 v{zi}, v{xr}, v{yi}, v{t+1}""")

KG_PITCH = 576
KG_REG = 16 * KG_PITCH
KG_MAX = 3 * KG_REG
KG_TAB = KG_MAX + 256
KG_LDS = KG_TAB + 9856

def pk_cmul_ops(z, x, y, t):
    return [f"v_pk_mul_f32 v[{t}:{t+1}], v[{x}:{x+1}], v[{y}:{y+1}] op_sel:[0,0] op_sel_hi:[0,1]",
            f"v_pk_fma_f32 v[{z}:{z+1}], v[{x}:{x+1}], v[{y}:{y+1}], v[{t}:{t+1}] op_sel:[1,1,0] op_sel_hi:[1,0,1] neg_lo:[1,0,0]"]

def gen_k1(a):
    a.raw(".globl k1_kernel\n.p2align 8\n.type k1_kernel,@function\nk1_kernel:")
    st = Stamper(a, 1, STAMP)
    st()
    a("""s_cmp_ge_u32 s2, 896
    s_cbranch_scc1 K1_END
    s_load_dwordx2 s[6:7], s[0:1], 128
    s_cmp_ge_u32 s2, 256
    s_cbranch_scc1 K1_KGEN
    s_load_dwordx2 s[4:5], s[0:1], 0""")
    wave_id(a, "s8")
    a("""v_and_b32 v1, 63, v0
    s_mul_i32 s3, s2, 10240
    v_lshlrev_b32 v2, 2, v0
    v_add_u32 v2, s3, v2
    v_add_u32 v3, 5120, v2
    s_waitcnt lgkmcnt(0)""")
    for t in range(8):
        a(f"global_load_dword v{4+t}, v{2 + t//4}, s[4:5] offset:{(t%4)*1280}")
    st()
    a("s_waitcnt vmcnt(0)")
    st()
    for t in range(8):
        a(f"""v_lshlrev_b32 v{12+2*t}, 16, v{4+t}
        v_and_b32 v{13+2*t}, 0xffff0000, v{4+t}""")
    ln_block(a, 12, 28, 36, "s8", "v1", 0)
    st()
    for c in range(2):
        for k in range(4):
            a(f"v_cvt_pk_f16_f32 v{44+4*c+k}, v{12+4*k+c}, v{12+4*k+2+c}")
    a("""s_lshl_b32 s3, s2, 4
    v_lshlrev_b32 v2, 13, v0
    v_add_u32 v2, s3, v2
    v_add_u32 v3, 4096, v2
    global_store_dwordx4 v2, v[44:47], s[6:7]
    global_store_dwordx4 v3, v[48:51], s[6:7]""")
    st()
    if STAMP: a("s_waitcnt vmcnt(0)")
    st(); st(); st(); st()
    st.finish(6, "s8")
    a("s_endpgm")
    st.n = 1
    a.label("K1_KGEN")
    a("""s_sub_u32 s3, s2, 256
    s_load_dwordx4 s[12:15], s[0:1], 8
    s_load_dwordx4 s[16:19], s[0:1], 24
    s_load_dwordx4 s[20:23], s[0:1], 40
    s_load_dwordx2 s[24:25], s[0:1], 56""")
    wave_id(a, "s8")
    a("""v_and_b32 v1, 63, v0
    s_mul_i32 s26, s8, %d
    s_cmp_ge_u32 s8, 3
    s_cbranch_scc1 K1_GATHER
    s_mul_i32 s9, s3, 384
    v_lshlrev_b32 v2, 1, v0
    v_add_u32 v2, s9, v2
    s_lshl_b32 s9, s3, 1
    v_mov_b32 v3, s9
    s_waitcnt lgkmcnt(0)
    global_load_ushort v4, v2, s[12:13]
    global_load_ushort v5, v2, s[14:15]
    global_load_ushort v6, v2, s[16:17]
    global_load_ushort v7, v2, s[18:19]
    global_load_ushort v8, v2, s[20:21]
    global_load_ushort v9, v2, s[22:23]
    global_load_ushort v10, v3, s[24:25]
    s_mov_b32 s27, 0x3fb8aa3b
    s_mov_b32 s28, 0x32a57060
    s_mov_b32 s29, 0x3f317218
    s_waitcnt vmcnt(0)""" % KG_REG)
    st()
    for r in range(4, 11):
        a(f"v_lshlrev_b32 v{r}, 16, v{r}")
    a("""v_mul_f32 v11, s27, v10
    v_fma_f32 v12, v10, s27, -v11
    v_fma_f32 v12, v10, s28, v12
    v_exp_f32 v11, v11
    v_mul_f32 v12, s29, v12
    v_fma_f32 v10, v11, v12, v11""")
    rne_bf16_1(a, 10, 10)
    a("""v_mul_f32 v4, v10, v4
    v_mul_f32 v5, v10, v5
    v_mul_f32 v6, v10, v6
    v_mul_f32 v7, v10, v7""")
    cmul(a, 12, 13, 8, 9, 6, 7, 14)
    a("""v_sub_f32 v13, 0, v13
    v_mul_f32 v4, s27, v4
    v_mul_f32 v5, 0.15915494, v5""")
    def cexp_ops(dst, L, conj, tb):
        return [f"v_mul_f32 v{tb}, {hx(f2u(float(L)))}, v4",
                f"v_mul_f32 v{tb+1}, {hx(f2u(float(-L if conj else L)))}, v5",
                f"v_exp_f32 v{tb}, v{tb}",
                f"v_fract_f32 v{tb+1}, v{tb+1}",
                f"v_cos_f32 v{tb+2}, v{tb+1}",
                f"v_sin_f32 v{tb+3}, v{tb+1}",
                f"v_mul_f32 v{dst}, v{tb}, v{tb+2}",
                f"v_mul_f32 v{dst+1}, v{tb}, v{tb+3}"]
    def zipemit(*streams):
        n = max(len(x) for x in streams)
        for k in range(n):
            for x in streams:
                if k < len(x): a(x[k])
    PS, P8, P128, PX = 18, 20, 22, 24
    C0, C1, C2 = 26, 28, 30
    T0, T1 = 14, 16
    VB = 32
    ACC = 64
    VA = 8
    zipemit(cexp_ops(P8, 8, False, 32), cexp_ops(PS, 1, True, 36), cexp_ops(P128, 128, True, 40))
    a(f"""v_lshlrev_b32 v2, 2, v1
    v_add_u32 v2, s26, v2
    v_and_b32 v6, 15, v1
    v_lshrrev_b32 v7, 4, v1
    v_mul_u32_u24 v3, {KG_PITCH}, v6
    v_lshl_add_u32 v3, v7, 4, v3
    v_add_u32 v3, s26, v3""")
    wtog = [0]
    def wr_ops(row, reg):
        b = (8, 76)[wtog[0]]; wtog[0] ^= 1
        return [f"v_cvt_pk_bf16_f32 v{b}, v{reg}, v{reg+1}",
                f"v_lshlrev_b32 v{b+2}, 16, v{b}",
                f"v_and_b32 v{b+3}, 0xffff0000, v{b}",
                f"ds_write_b32 v2, v{b} offset:{row*KG_PITCH}",
                f"v_pk_add_f32 v[{b+2}:{b+3}], v[{reg}:{reg+1}], v[{b+2}:{b+3}] neg_lo:[0,1] neg_hi:[0,1]",
                f"v_cvt_pk_bf16_f32 v{b+1}, v{b+2}, v{b+3}",
                f"ds_write_b32 v2, v{b+1} offset:{row*KG_PITCH+288}"]
    a("""v_mov_b32 v26, 1.0
    v_mov_b32 v27, 0""")
    zipemit(pk_cmul_ops(PX, P8, P8, T0), wr_ops(0, C0), wr_ops(1, P8))
    ca, cb = PX, P8
    for j in range(2, 16, 2):
        ops = []
        if j == 2:
            na = PX
            s1 = []
        else:
            na = C0 if ca != C0 else C2
            s1 = pk_cmul_ops(na, ca, PX, T0)
        nb_ = C1 if cb != C1 else 62
        s2 = pk_cmul_ops(nb_, cb, PX, T1)
        zipemit(s1, s2)
        zipemit(wr_ops(j, na), wr_ops(j + 1, nb_))
        ca, cb = na, nb_
    st()
    a("s_waitcnt lgkmcnt(0)")
    for s_ in range(4):
        a(f"ds_read_b128 v[{VB+4*s_}:{VB+4*s_+3}], v3 offset:{64*s_}")
        a(f"ds_read_b128 v[{VB+16+4*s_}:{VB+16+4*s_+3}], v3 offset:{288+64*s_}")
    for r in range(12):
        a(f"v_mov_b32 v{ACC+r}, 0")
    a("s_waitcnt lgkmcnt(0)")
    def mm(T):
        a("s_waitcnt lgkmcnt(0)")
        acc = f"v[{ACC+4*T}:{ACC+4*T+3}]"
        sets = ((8, 76), (24, 28))
        for half in range(2):
            for g in range(2):
                h, l = sets[g]
                a(f"ds_read_b128 v[{h}:{h+3}], v3 offset:{64*(2*half+g)}")
                a(f"ds_read_b128 v[{l}:{l+3}], v3 offset:{288+64*(2*half+g)}")
            for g in range(2):
                a(f"s_waitcnt lgkmcnt({2-2*g})")
                s_ = 2 * half + g
                h, l = sets[g]
                ah = f"v[{h}:{h+3}]"; al = f"v[{l}:{l+3}]"
                bh = f"v[{VB+4*s_}:{VB+4*s_+3}]"; bl = f"v[{VB+16+4*s_}:{VB+16+4*s_+3}]"
                a(f"v_mfma_f32_16x16x32_bf16 {acc}, {al}, {bh}, {acc}")
                a(f"v_mfma_f32_16x16x32_bf16 {acc}, {ah}, {bl}, {acc}")
                a(f"v_mfma_f32_16x16x32_bf16 {acc}, {ah}, {bh}, {acc}")
    def chain2(base, nsteps, row0, rowstep, leafrow):
        cur = base
        for e in range(nsteps):
            nxt = C0 if cur != C0 else C1
            s1 = pk_cmul_ops(nxt, cur, PS, T0) if e + 1 < nsteps else []
            s2 = pk_cmul_ops(C2, cur, P128, T1)
            zipemit(s2, s1, wr_ops(row0 + e * rowstep, cur))
            zipemit(wr_ops(row0 + e * rowstep + leafrow, C2))
            cur = nxt
    chain2(12, 8, 0, 1, 8)
    mm(0)
    st()
    zipemit(cexp_ops(PX, 256, True, 8), cexp_ops(PS, 2, True, 76))
    zipemit(pk_cmul_ops(20, 12, PX, T0))
    zipemit(cexp_ops(PX, 512, True, 76), [])
    chain2(20, 4, 0, 1, 4)
    zipemit(cexp_ops(PS, 4, True, 76), pk_cmul_ops(C0, 12, PX, T0))
    zipemit(pk_cmul_ops(C1, C0, PS, T1))
    ca, cb = C0, C1
    alt = {C0: C2, C2: C0, C1: 20, 20: C1}
    for i2 in range(4):
        s1 = pk_cmul_ops(alt[ca], ca, P128, T0) if i2 < 3 else []
        s2 = pk_cmul_ops(alt[cb], cb, P128, T1) if i2 < 3 else []
        zipemit(s1, s2)
        zipemit(wr_ops(8 + 2 * i2, ca), wr_ops(9 + 2 * i2, cb))
        ca, cb = alt[ca], alt[cb]
    mm(1)
    zipemit(cexp_ops(PX, 1024, True, 8), cexp_ops(PS, 256, True, 76))
    zipemit(pk_cmul_ops(C0, 12, PX, T0))
    zipemit(pk_cmul_ops(C1, C0, P128, T1))
    ca, cb = C0, C1
    for i2 in range(0, 9, 2):
        s1 = pk_cmul_ops(alt[ca], ca, PS, T0) if i2 + 2 <= 8 else []
        s2 = pk_cmul_ops(alt[cb], cb, PS, T1) if i2 + 3 <= 8 else []
        zipemit(s1, s2)
        zipemit(wr_ops(i2, ca), wr_ops(i2 + 1, cb) if i2 + 1 <= 8 else [])
        ca, cb = alt[ca], alt[cb]
    mm(2)
    st()
    a("""v_lshlrev_b32 v8, 2, v6
    v_lshl_add_u32 v8, v7, 8, v8
    v_add_u32 v8, s26, v8
    s_waitcnt lgkmcnt(0)""")
    for T in range(3):
        for v in range(4):
            a(f"ds_write_b32 v8, v{ACC+4*T+v} offset:{1024*T + 64*v}")
    a.label("K1_GATHER")
    a("s_waitcnt lgkmcnt(0)")
    st()
    a("s_barrier")
    a(f"""v_lshlrev_b32 v2, 4, v0
    v_mov_b32 v41, 0
    v_cmp_gt_u32 vcc, 192, v0
    s_and_saveexec_b64 s[30:31], vcc
    s_cbranch_execz K1_P1DONE
    ds_read_b128 v[4:7], v2
    ds_read_b128 v[8:11], v2 offset:{KG_REG}
    ds_read_b128 v[12:15], v2 offset:{2*KG_REG}
    v_lshrrev_b32 v16, 2, v0
    v_and_b32 v17, 3, v0
    v_and_b32 v18, 7, v16
    v_lshrrev_b32 v19, 3, v16
    v_lshl_add_u32 v18, v19, 7, v18
    v_and_b32 v19, 3, v16
    v_bfe_u32 v20, v16, 2, 1
    v_lshlrev_b32 v19, 1, v19
    v_lshl_add_u32 v19, v20, 7, v19
    v_add_u32 v19, 256, v19
    v_and_b32 v20, 1, v16
    v_bfe_u32 v21, v16, 1, 2
    v_lshlrev_b32 v20, 2, v20
    v_lshl_add_u32 v20, v21, 7, v20
    v_add_u32 v20, 512, v20
    v_subrev_u32 v21, 32, v16
    v_lshlrev_b32 v21, 7, v21
    v_add_u32 v21, 1024, v21
    v_cmp_le_u32 vcc, 16, v16
    v_cndmask_b32 v18, v18, v19, vcc
    v_cmp_le_u32 vcc, 24, v16
    v_cndmask_b32 v18, v18, v20, vcc
    v_cmp_le_u32 vcc, 32, v16
    v_cndmask_b32 v18, v18, v21, vcc
    v_lshl_add_u32 v18, v17, 5, v18
    v_lshrrev_b32 v19, 3, v18
    v_add_lshl_u32 v18, v18, v19, 2
    s_waitcnt lgkmcnt(0)""")
    for k in range(4):
        a(f"""v_add_f32 v{4+k}, v{4+k}, v{8+k}
        v_add_f32 v{4+k}, v{4+k}, v{12+k}""")
    a("""v_max_f32 v41, |v4|, |v5|
    v_max3_f32 v41, v41, |v6|, |v7|
    v_cmp_gt_u32 vcc, 41, v16
    s_and_b64 exec, exec, vcc""")
    for k in range(4):
        a(f"ds_write_b32 v18, v{4+k} offset:{KG_TAB + 36*k}")
    a.label("K1_P1DONE")
    a("s_mov_b64 exec, -1")
    dpp_reduce(a, [41], op="v_max_f32")
    a(f"""s_lshl_b32 s9, s8, 2
    v_mov_b32 v42, s9
    s_mov_b32 exec_lo, 0
    s_mov_b32 exec_hi, 0x80000000
    ds_write_b32 v42, v41 offset:{KG_MAX}
    s_mov_b64 exec, -1
    v_lshlrev_b32 v2, 3, v0
    v_sub_u32 v2, 2047, v2""")
    for s_ in range(9):
        a(f"""v_subrev_u32 v3, {s_}, v2
        v_max_i32 v3, 0, v3
        v_cvt_f32_u32 v3, v3
        v_cvt_pk_bf16_f32 v3, v3, v3
        v_lshlrev_b32 v3, 16, v3
        v_cvt_u32_f32 v3, v3
        v_lshrrev_b32 v4, 3, v3
        v_add_lshl_u32 v{8+s_}, v3, v4, 2""")
    a(f"""s_waitcnt lgkmcnt(0)
    s_barrier
    v_mov_b32 v42, 0
    ds_read_b128 v[44:47], v42 offset:{KG_MAX}""")
    for s_ in range(9):
        a(f"ds_read_b32 v{20+s_}, v{8+s_} offset:{KG_TAB}")
    a(f"""s_waitcnt lgkmcnt(9)
    v_max3_f32 v41, v44, v45, v46
    v_lshrrev_b32 v41, 23, v41
    v_sub_u32 v41, 268, v41
    v_max_i32 v41, 1, v41
    v_min_i32 v41, 253, v41
    v_sub_u32 v42, 254, v41
    v_lshlrev_b32 v41, 23, v41
    v_lshlrev_b32 v42, 23, v42
    s_waitcnt lgkmcnt(0)""")
    for s_ in range(9):
        a(f"""v_subrev_u32 v3, {s_}, v2
        v_mul_f32 v{20+s_}, v41, v{20+s_}
        v_cmp_le_i32 vcc, 0, v3
        v_cndmask_b32 v{32+s_}, 0, v{20+s_}, vcc""")
    for k in range(4):
        a(f"v_cvt_pk_f16_f32 v{44+k}, v{32+2*k}, v{33+2*k}")
    for k in range(4):
        a(f"v_cvt_pk_f16_f32 v{48+k}, v{33+2*k}, v{34+2*k}")
    st()
    ws_ptr(a, 10, 6, KR_OFF)
    ws_ptr(a, 12, 6, KS_OFF)
    a(f"""s_mul_i32 s9, s3, {KR_STRIDE}
    v_lshlrev_b32 v2, 4, v0
    v_add_u32 v2, s9, v2
    v_add_u32 v3, {KR2}, v2
    v_cmp_gt_u32 vcc, 260, v0
    s_and_saveexec_b64 s[30:31], vcc
    s_cbranch_execz K1_END
    global_store_dwordx4 v2, v[44:47], s[10:11]
    global_store_dwordx4 v3, v[48:51], s[10:11]
    s_lshl_b32 s9, s3, 2
    v_mov_b32 v2, s9
    v_cmp_eq_u32 vcc, 0, v0
    s_and_saveexec_b64 s[30:31], vcc
    s_cbranch_execz K1_END
    global_store_dword v2, v42, s[12:13]""")
    if STAMP:
        a("s_waitcnt vmcnt(0)")
        st()
        st.finish(6, "s8")
    a.label("K1_END")
    a("s_endpgm")

def build(which=("k1",)):
    a = Asm()
    hdr = []
    kds = []
    if "k1" in which:
        hdr.append(f"; @launch kernel=k1_kernel grid=(896,1,1) block=(320,1,1) lds={KG_LDS}")
    a.raw("\n".join(hdr))
    a.raw('.amdgcn_target "amdgcn-amd-amdhsa--gfx950"\n.text')
    if "k1" in which:
        gen_k1(a); kds.append(kd("k1_kernel", 100))
    a.raw('.section .rodata,"a"')
    for k in kds: a.raw(k)
    return a.text()

if __name__ == "__main__":
    out = sys.argv[1]
    which = sys.argv[2].split(",")
    open(out, "w").write(build(which))
```

```python
from gen import *
from stamp import Stamper
import os
STAMP = os.environ.get('STAMP','') != ''

K2_UB = 16640
K2_LDS = 36864

def gen_k2(a):
    a.raw(".globl k2_kernel\n.p2align 8\n.type k2_kernel,@function\nk2_kernel:")
    st = Stamper(a, 2, STAMP)
    st()
    a("""s_cmp_ge_u32 s2, 640
    s_cbranch_scc1 K2_END
    s_load_dwordx2 s[6:7], s[0:1], 128
    s_load_dwordx2 s[4:5], s[0:1], 64
    s_load_dwordx4 s[48:51], s[0:1], 88
    s_load_dwordx2 s[52:53], s[0:1], 104""")
    wave_id(a, "s8")
    a(f"""v_and_b32 v1, 63, v0
    s_lshl_b32 s9, s2, 12
    v_lshlrev_b32 v2, 4, v0
    v_add_u32 v3, s9, v2
    s_mul_i32 s16, s2, {KR_STRIDE}
    s_and_b32 s17, s8, 1
    s_mul_i32 s17, s17, {KR2}
    s_add_u32 s16, s16, s17
    s_lshr_b32 s17, s8, 1
    s_lshl_b32 s17, s17, 2
    s_add_u32 s16, s16, s17
    v_lshlrev_b32 v4, 4, v1
    v_add_u32 v5, s16, v4
    v_add_u32 v6, 4096, v5
    s_lshl_b32 s18, s2, 1
    v_mov_b32 v7, s18
    s_lshl_b32 s18, s2, 2
    s_waitcnt lgkmcnt(0)""")
    ws_ptr(a, 10, 6, KR_OFF)
    a("global_load_dwordx4 v[8:11], v3, s[6:7]")
    for rho in range(4):
        a(f"global_load_dwordx4 v[{16+4*rho}:{19+4*rho}], v5, s[10:11] offset:{1024*rho}")
    a("""v_cmp_gt_u32 vcc, 4, v1
    s_and_saveexec_b64 s[30:31], vcc
    global_load_dwordx4 v[32:35], v6, s[10:11]
    s_mov_b64 exec, s[30:31]
    global_load_ushort v12, v7, s[4:5]""")
    ws_ptr(a, 12, 6, KS_OFF)
    ws_ptr(a, 14, 6, VT_OFF)
    a("s_load_dword s19, s[12:13], s18")
    a(f"""v_mov_b32 v56, 0
    v_mov_b32 v57, 0
    v_mov_b32 v58, 0
    v_mov_b32 v59, 0
    v_cmp_gt_u32 vcc, 96, v0
    s_and_saveexec_b64 s[30:31], vcc
    ds_write_b128 v2, v[56:59] offset:{K2_UB}
    s_mov_b64 exec, s[30:31]
    v_lshrrev_b32 v13, 2, v0
    v_mul_u32_u24 v15, 144, v13
    v_mul_u32_u24 v13, 96, v13
    v_and_b32 v14, 3, v0
    v_lshl_add_u32 v13, v14, 4, v13
    v_lshl_add_u32 v15, v14, 5, v15
    s_mul_i32 s17, s8, 4160
    v_add_u32 v14, s17, v4""")
    a(f"""v_and_b32 v2, 15, v1
    v_lshrrev_b32 v3, 4, v1
    v_and_b32 v4, 3, v1
    v_sub_u32 v4, 3, v4
    v_mul_u32_u24 v4, 4160, v4
    v_lshrrev_b32 v5, 2, v2
    v_lshlrev_b32 v6, 1, v3
    v_sub_u32 v5, v6, v5
    v_lshl_add_u32 v4, v5, 3, v4
    s_lshl_b32 s17, s8, 8
    s_sub_u32 s17, {4088 - (32 + 192 + 3072)}, s17
    v_add_u32 v4, s17, v4
    s_mul_i32 s17, s8, 384
    s_sub_u32 s17, {K2_UB + 13*96}, s17
    v_mul_u32_u24 v5, 96, v2
    v_lshl_add_u32 v5, v3, 4, v5
    v_add_u32 v5, s17, v5
    s_mul_i32 s17, s8, 9216
    v_mul_u32_u24 v6, 144, v2
    v_lshl_add_u32 v6, v3, 4, v6
    v_add_u32 v6, s17, v6""")
    ACC = 80
    for r in range(32):
        a(f"v_mov_b32 v{ACC+r}, 0")
    st()
    a("s_waitcnt vmcnt(6)")
    a(f"ds_write_b128 v13, v[8:11] offset:{K2_UB+1536}")
    for rho in range(4):
        a(f"s_waitcnt vmcnt({5-rho})")
        a(f"ds_write_b128 v14, v[{16+4*rho}:{19+4*rho}] offset:{1024*rho}")
    a("""s_waitcnt vmcnt(0)
    v_cmp_gt_u32 vcc, 4, v1
    s_and_saveexec_b64 s[30:31], vcc
    ds_write_b128 v14, v[32:35] offset:4096
    s_mov_b64 exec, s[30:31]""")
    st()
    a("""s_cmp_lg_u32 s8, 3
    s_cbranch_scc1 K2_NOPF
    s_and_b32 s54, s2, 7
    s_lshr_b32 s55, s2, 3
    s_mul_i32 s56, s55, 24576
    s_mul_i32 s57, s54, 384
    s_add_u32 s56, s56, s57
    v_mul_u32_u24 v112, 43691, v1
    v_lshrrev_b32 v112, 18, v112
    v_mul_u32_u24 v113, 6, v112
    v_sub_u32 v113, v1, v113
    v_mul_u32_u24 v112, 3072, v112
    v_lshl_add_u32 v112, v113, 6, v112
    v_add_u32 v112, s56, v112
    s_mul_i32 s57, s54, 245760
    s_mul_i32 s58, s55, 3072
    s_add_u32 s57, s57, s58
    v_lshlrev_b32 v113, 6, v1
    v_add_u32 v113, s57, v113
    v_cmp_gt_u32 vcc, 48, v1
    s_and_saveexec_b64 s[30:31], vcc
    global_load_dword v114, v112, s[48:49]
    global_load_dword v115, v112, s[50:51]
    global_load_dword v116, v113, s[52:53]
    s_mov_b64 exec, s[30:31]""")
    a.label("K2_NOPF")
    a("""s_waitcnt lgkmcnt(0)""")
    st()
    a("s_barrier")
    st()
    FA = 16
    FBs = (48, 64)
    q = []
    def rdA(dd, p, j):
        r = FA + 4 * (2 * j + p)
        off = (32-32*p) + 64*(3-dd) + 1024*(3-j)
        a(f"ds_read_b64 v[{r}:{r+1}], v4 offset:{off}"); q.append(("A", dd, p, j))
        a(f"ds_read_b64 v[{r+2}:{r+3}], v4 offset:{off+8}"); q.append(("A", dd, p, j))
    def rdB(dd, m):
        r = FBs[dd & 1] + 4 * m
        a(f"ds_read_b128 v[{r}:{r+3}], v5 offset:{(16*m + 3 - dd)*96}"); q.append(("B", dd, m))
    def need(tags):
        last = -1
        for k, t in enumerate(q):
            if t in tags: last = k
        if last >= 0:
            n = len(q) - 1 - last
            a(f"s_waitcnt lgkmcnt({min(n,15)})")
            if n <= 15: del q[:last+1]
            else: del q[:len(q)-15]
    rdB(0, 0); rdA(0, 0, 0); rdA(0, 1, 0); rdB(0, 1); rdB(0, 2); rdB(0, 3)
    for j in range(1, 4):
        rdA(0, 0, j); rdA(0, 1, j)
    for dd in range(4):
        for j in range(4):
            for nb in range(j, 4):
                m = nb - j
                for p in range(2):
                    need([("B", dd, m), ("A", dd, p, j)])
                    ra = FA + 4 * (2 * j + p); rb = FBs[dd & 1] + 4 * m; rc = ACC + 4 * (2 * nb + p)
                    a(f"v_mfma_f32_16x16x32_f16 v[{rc}:{rc+3}], v[{ra}:{ra+3}], v[{rb}:{rb+3}], v[{rc}:{rc+3}]")
            if dd < 3:
                if j == 0:
                    for m in range(4): rdB(dd + 1, m)
                rdA(dd + 1, 0, j); rdA(dd + 1, 1, j)
    st()
    a("""s_barrier""")
    st()
    for nb in range(4):
        for p in range(2):
            rc = ACC + 4 * (2 * nb + p)
            a(f"ds_write_b128 v6, v[{rc}:{rc+3}] offset:{2304*nb + 64*p}")
    a("""s_waitcnt lgkmcnt(0)
    s_barrier""")
    for w in range(4):
        a(f"ds_read_b128 v[{16+8*w}:{19+8*w}], v15 offset:{9216*w}")
        a(f"ds_read_b128 v[{20+8*w}:{23+8*w}], v15 offset:{9216*w+16}")
    a("""v_lshlrev_b32 v12, 16, v12""")
    for k in range(4):
        a(f"""v_cvt_f32_f16 v52, v{8+k}
        v_lshrrev_b32 v53, 16, v{8+k}
        v_cvt_f32_f16 v53, v53
        v_mul_f32 v52, v12, v52
        v_mul_f32 v53, v12, v53
        v_cvt_pk_bf16_f32 v{48+k}, v52, v53""")
    a("s_waitcnt lgkmcnt(0)")
    for k in range(8):
        a(f"""v_add_f32 v{16+k}, v{16+k}, v{24+k}
        v_add_f32 v{32+k}, v{32+k}, v{40+k}
        v_add_f32 v{16+k}, v{16+k}, v{32+k}
        v_mul_f32 v{16+k}, s19, v{16+k}""")
    for k in range(4):
        a(f"""v_cvt_pk_bf16_f32 v55, v{16+2*k}, v{17+2*k}
        v_lshlrev_b32 v52, 16, v{48+k}
        v_and_b32 v53, 0xffff0000, v{48+k}
        v_lshlrev_b32 v56, 16, v55
        v_and_b32 v57, 0xffff0000, v55
        v_add_f32 v52, v52, v56
        v_add_f32 v53, v53, v57
        v_cvt_pk_bf16_f32 v{60+k}, v52, v53""")
    a("""s_lshl_b32 s9, s2, 12
    v_lshlrev_b32 v2, 4, v0
    v_add_u32 v3, s9, v2
    global_store_dwordx4 v3, v[60:63], s[14:15]""")
    st()
    if STAMP: a("s_waitcnt vmcnt(0)")
    st()
    st.finish(6, "s8")
    a.label("K2_END")
    a("s_endpgm")

def gen_k3(a):
    a.raw(".globl k3_kernel\n.p2align 8\n.type k3_kernel,@function\nk3_kernel:")
    a("""s_cmp_ge_u32 s2, 256
    s_cbranch_scc1 K3_END
    s_load_dwordx2 s[6:7], s[0:1], 128
    s_load_dwordx2 s[4:5], s[0:1], 0
    s_load_dwordx2 s[10:11], s[0:1], 80
    s_load_dwordx2 s[12:13], s[0:1], 112""")
    wave_id(a, "s8")
    a("""v_and_b32 v1, 63, v0
    s_mul_i32 s3, s2, 10240
    v_lshlrev_b32 v2, 2, v0
    v_add_u32 v60, s3, v2
    v_add_u32 v61, 5120, v60
    s_waitcnt lgkmcnt(0)""")
    ws_ptr(a, 14, 6, VT_OFF)
    for t in range(8):
        a(f"global_load_dword v{4+t}, v{60 + t//4}, s[4:5] offset:{(t%4)*1280}")
    a("""s_lshl_b32 s3, s2, 4
    v_lshlrev_b32 v3, 13, v0
    v_add_u32 v3, s3, v3
    v_add_u32 v62, 4096, v3
    global_load_dwordx4 v[44:47], v3, s[14:15]
    global_load_dwordx4 v[48:51], v62, s[14:15]
    global_load_dword v52, v2, s[10:11]""")
    a("s_waitcnt vmcnt(0)")
    for t in range(8):
        k = t // 2
        if t % 2 == 0:
            a(f"""v_lshlrev_b32 v36, 16, v{44+k}
            v_lshlrev_b32 v37, 16, v{48+k}""")
        else:
            a(f"""v_and_b32 v36, 0xffff0000, v{44+k}
            v_and_b32 v37, 0xffff0000, v{48+k}""")
        a(f"""v_lshlrev_b32 v38, 16, v{4+t}
        v_and_b32 v39, 0xffff0000, v{4+t}
        v_add_f32 v36, v36, v38
        v_add_f32 v37, v37, v39
        v_cvt_pk_bf16_f32 v{64+t}, v36, v37
        v_lshlrev_b32 v{12+2*t}, 16, v{64+t}
        v_and_b32 v{13+2*t}, 0xffff0000, v{64+t}""")
    ln_block(a, 12, 28, 36, "s8", "v1", 0)
    a("""v_lshlrev_b32 v53, 16, v52
    v_and_b32 v54, 0xffff0000, v52""")
    for t in range(8):
        x0, x1 = 12 + 2 * t, 13 + 2 * t
        a(f"""v_lshlrev_b32 v36, 16, v{64+t}
        v_and_b32 v37, 0xffff0000, v{64+t}
        v_add_f32 v36, v36, v{x0}
        v_add_f32 v37, v37, v{x1}
        v_cvt_pk_bf16_f32 v{4+t}, v36, v37
        v_mul_f32 v{28+t}, v53, v{x0}
        v_fmac_f32 v{28+t}, v54, v{x1}
        v_cvt_pk_bf16_f32 v{72+t}, v{x0}, v{x1}""")
    for t in range(8):
        a(f"global_store_dword v{60 + t//4}, v{4+t}, s[12:13] offset:{(t%4)*1280}")
    cross_wave_sum8(a, 28, 512, 36, 37, "s8", "v1")
    a("""v_cvt_pk_bf16_f32 v36, v36, v36
    v_and_b32 v36, 0xffff, v36
    v_bfe_i32 v37, v36, 15, 1
    v_xor_b32 v38, 0x8000, v36
    v_not_b32 v39, v36
    v_and_b32 v39, 0xffff, v39
    v_cmp_ne_u32 vcc, 0, v37
    v_cndmask_b32 v38, v38, v39, vcc
    v_lshlrev_b32 v38, 16, v38
    v_and_b32 v39, 7, v1
    s_lshl_b32 s3, s2, 3
    v_add_u32 v39, s3, v39
    v_sub_u32 v39, 0xffff, v39
    v_or_b32 v38, v38, v39""")
    for sh in (1, 2, 4):
        a(f"v_max_u32_dpp v38, v38, v38 row_shr:{sh} row_mask:0xf bank_mask:0xf bound_ctrl:0")
    a("""v_readlane_b32 s16, v38, 7
    s_and_b32 s17, s16, 7
    s_xor_b32 s17, s17, 7""")
    ws_ptr(a, 18, 6, KEY_OFF)
    ws_ptr(a, 20, 6, CAND_OFF)
    a("""s_mul_i32 s3, s2, 2560
    v_add_u32 v3, s3, v2""")
    for t in range(8):
        a(f"""s_cmp_eq_u32 s17, {t}
        s_cbranch_scc0 K3_SK{t}
        global_store_dword v3, v{72+t}, s[20:21]
        global_store_dword v3, v{64+t}, s[20:21] offset:1280""")
        a.label(f"K3_SK{t}")
    a("""s_lshl_b32 s3, s2, 2
    v_mov_b32 v3, s3
    v_mov_b32 v4, s16
    v_cmp_eq_u32 vcc, 0, v0
    s_and_saveexec_b64 s[30:31], vcc
    s_cbranch_execz K3_END
    global_store_dword v3, v4, s[18:19]""")
    a.label("K3_END")
    a("s_endpgm")

NW4 = 96
def argmax_keys(a, skey_ptr, sres, vt):
    a(f"""v_lshlrev_b32 v{vt}, 4, v1
    global_load_dwordx4 v[{vt+4}:{vt+7}], v{vt}, s[{skey_ptr}:{skey_ptr+1}]
    s_waitcnt vmcnt(0)
    v_max_u32 v{vt+4}, v{vt+4}, v{vt+5}
    v_max_u32 v{vt+6}, v{vt+6}, v{vt+7}
    v_max_u32 v{vt+4}, v{vt+4}, v{vt+6}""")
    dpp_reduce(a, [vt + 4], op="v_max_u32")
    a(f"v_readlane_b32 {sres}, v{vt+4}, 63")

def gen_k4(a):
    a.raw(".globl k4_kernel\n.p2align 8\n.type k4_kernel,@function\nk4_kernel:")
    a(f"""s_cmp_ge_u32 s2, {NW4}
    s_cbranch_scc1 K4_END
    s_load_dwordx2 s[6:7], s[0:1], 128
    s_load_dwordx4 s[12:15], s[0:1], 88
    s_load_dwordx2 s[16:17], s[0:1], 104
    s_load_dwordx2 s[4:5], s[0:1], 112
    s_load_dwordx2 s[10:11], s[0:1], 120""")
    wave_id(a, "s8")
    a("""v_and_b32 v1, 63, v0
    s_and_b32 s3, s2, 7
    s_mul_i32 s3, s3, 12
    s_lshr_b32 s9, s2, 3
    s_add_u32 s3, s3, s9
    v_and_b32 v2, 31, v1
    v_lshrrev_b32 v3, 5, v1
    s_lshl_b32 s9, s8, 5
    v_add_u32 v2, s9, v2
    v_mul_u32_u24 v4, 3072, v2
    v_lshl_add_u32 v4, v3, 4, v4
    s_lshl_b32 s9, s3, 5
    v_add_u32 v4, s9, v4
    s_waitcnt lgkmcnt(0)""")
    ws_ptr(a, 18, 6, KEY_OFF)
    ws_ptr(a, 20, 6, CAND_OFF)
    a("""v_lshlrev_b32 v100, 4, v1
    global_load_dwordx4 v[104:107], v100, s[18:19]""")
    for it in range(4):
        if it > 0: a(f"v_add_u32 v{4+it}, {160*3072*it}, v4")
        a(f"global_load_dwordx4 v[{16+4*it}:{19+4*it}], v{4+it}, s[12:13]")
        a(f"global_load_dwordx4 v[{32+4*it}:{35+4*it}], v{4+it}, s[14:15]")
    a("""s_mul_i32 s9, s3, 20480
    v_lshlrev_b32 v8, 2, v0
    v_add_u32 v9, s9, v8""")
    for f in range(16):
        if f % 3 == 0 and f > 0: a(f"v_add_u32 v9, 3840, v9")
        a(f"global_load_dword v{48+f}, v9, s[16:17] offset:{(f%3)*1280}")
    a("""s_waitcnt vmcnt(24)
    v_max_u32 v104, v104, v105
    v_max_u32 v106, v106, v107
    v_max_u32 v104, v104, v106""")
    dpp_reduce(a, [104], op="v_max_u32")
    a("""v_readlane_b32 s22, v104, 63
    s_and_b32 s23, s22, 0xffff
    s_sub_u32 s23, 0xffff, s23
    s_lshr_b32 s24, s23, 3
    s_mul_i32 s24, s24, 2560
    v_lshlrev_b32 v10, 1, v2
    v_add_u32 v10, s24, v10""")
    for it in range(4):
        a(f"global_load_ushort v{64+it}, v10, s[20:21] offset:{320*it}")
    a("s_waitcnt vmcnt(0)")
    for r in range(16):
        a(f"v_mov_b32 v{68+r}, 0")
    for it in range(4):
        a(f"v_lshlrev_b32 v{64+it}, 16, v{64+it}")
        for mat in range(2):
            for k in range(4):
                src = 16 + 16 * mat + 4 * it + k
                acc = 68 + 8 * mat + 2 * k
                a(f"""v_lshlrev_b32 v84, 16, v{src}
                v_and_b32 v85, 0xffff0000, v{src}
                v_fmac_f32 v{acc}, v{64+it}, v84
                v_fmac_f32 v{acc+1}, v{64+it}, v85""")
    dpp_reduce(a, list(range(68, 84)), full=False)
    a("""s_lshl_b32 s9, s8, 7
    v_lshlrev_b32 v86, 6, v3
    v_add_u32 v86, s9, v86
    s_mov_b32 exec_lo, 0x80000000
    s_mov_b32 exec_hi, 0x80000000""")
    for k in range(4):
        a(f"ds_write_b128 v86, v[{68+4*k}:{71+4*k}] offset:{16*k}")
    a("""s_mov_b64 exec, -1
    s_waitcnt lgkmcnt(0)
    s_barrier""")
    a("""v_and_b32 v86, 15, v1
    v_lshrrev_b32 v87, 3, v86
    v_and_b32 v86, 7, v86
    v_lshlrev_b32 v86, 2, v86
    v_lshl_add_u32 v86, v87, 6, v86""")
    for w in range(5):
        a(f"ds_read_b32 v{68+w}, v86 offset:{128*w}")
        a(f"ds_read_b32 v{76+w}, v86 offset:{128*w+32}")
    a("s_waitcnt lgkmcnt(0)")
    for w in range(1, 5):
        a(f"""v_add_f32 v68, v68, v{68+w}
        v_add_f32 v76, v76, v{76+w}""")
    rne_bf16_1(a, 68, 68)
    rne_bf16_1(a, 76, 76)
    a("""v_mul_f32 v69, 0xbfb8aa3b, v68
    v_exp_f32 v69, v69
    v_add_f32 v69, 1.0, v69
    v_rcp_f32 v70, v69
    v_mul_f32 v71, v68, v70
    v_fma_f32 v72, -v71, v69, v68
    v_fmac_f32 v71, v72, v70""")
    rne_bf16_1(a, 71, 71)
    a("v_mul_f32 v71, v71, v76")
    rne_bf16_1(a, 71, 71)
    for f in range(16):
        a(f"v_readlane_b32 s{32+f}, v71, {f}")
    a("""v_mov_b32 v84, 0
    v_mov_b32 v85, 0""")
    for f in range(16):
        a(f"""v_lshlrev_b32 v86, 16, v{48+f}
        v_and_b32 v87, 0xffff0000, v{48+f}
        v_fmac_f32 v84, s{32+f}, v86
        v_fmac_f32 v85, s{32+f}, v87""")
    ws_ptr(a, 28, 6, PART_OFF)
    a(f"""s_mul_i32 s9, s2, 2560
    v_lshlrev_b32 v8, 3, v0
    v_add_u32 v8, s9, v8
    global_store_dwordx2 v8, v[84:85], s[28:29] sc1
    s_waitcnt vmcnt(0)
    s_barrier
    s_cmp_lg_u32 s8, 0
    s_cbranch_scc1 K4_ARR
    v_mov_b32 v8, 0
    v_mov_b32 v9, 1
    s_mov_b64 exec, 1
    global_atomic_add v8, v9, s[10:11] sc1
    s_mov_b64 exec, -1""")
    a.label("K4_ARR")
    a("""s_cmp_ge_u32 s2, 10
    s_cbranch_scc1 K4_END""")
    a("""s_lshl_b32 s3, s2, 7
    s_add_u32 s3, s3, s24
    v_lshlrev_b32 v3, 1, v1
    v_add_u32 v3, s3, v3
    global_load_ushort v40, v3, s[20:21]
    global_load_ushort v41, v3, s[20:21] offset:1280
    s_cmp_lg_u32 s8, 0
    s_cbranch_scc1 K4_WAIT
    v_mov_b32 v8, 0""")
    a.label("K4_POLL")
    a(f"""global_load_dword v9, v8, s[10:11] sc1
    s_waitcnt vmcnt(0)
    v_readfirstlane_b32 s9, v9
    s_cmp_ge_u32 s9, {NW4}
    s_cbranch_scc1 K4_WAIT
    s_sleep 1
    s_branch K4_POLL""")
    a.label("K4_WAIT")
    a("s_barrier")
    a("""s_lshl_b32 s3, s2, 8
    s_mul_i32 s9, s8, 2560
    s_add_u32 s9, s9, s3
    v_lshlrev_b32 v2, 2, v1
    v_add_u32 v2, s9, v2
    v_mov_b32 v67, 0""")
    for k in range(19):
        a(f"global_load_dword v{48+k}, v2, s[28:29] sc1")
        a("v_add_u32 v2, 12800, v2")
    a("""s_cmp_lg_u32 s8, 0
    s_cbranch_scc1 K4_NO20
    global_load_dword v67, v2, s[28:29] sc1""")
    a.label("K4_NO20")
    a("s_waitcnt vmcnt(0)")
    for k in range(1, 20):
        a(f"v_add_f32 v48, v48, v{48+k}")
    a("""v_lshlrev_b32 v4, 2, v0
    ds_write_b32 v4, v48
    s_waitcnt lgkmcnt(0)
    s_barrier
    s_cmp_lg_u32 s8, 0
    s_cbranch_scc1 K4_END
    ds_read_b32 v9, v4 offset:256
    ds_read_b32 v10, v4 offset:512
    ds_read_b32 v11, v4 offset:768
    ds_read_b32 v12, v4 offset:1024
    s_waitcnt lgkmcnt(0)
    v_add_f32 v8, v48, v9
    v_add_f32 v10, v10, v11
    v_add_f32 v8, v8, v10
    v_add_f32 v8, v8, v12""")
    rne_bf16_1(a, 8, 8)
    a("""s_lshr_b32 s25, s22, 16
    s_and_b32 s26, s25, 0x8000
    s_xor_b32 s27, s25, 0x8000
    s_not_b32 s14, s25
    s_and_b32 s14, s14, 0xffff
    s_cmp_lg_u32 s26, 0
    s_cselect_b32 s25, s27, s14
    s_lshl_b32 s25, s25, 16
    v_mov_b32 v12, s25
    v_mul_f32 v13, 0xbfb8aa3b, v12
    v_exp_f32 v13, v13
    v_add_f32 v13, 1.0, v13
    v_rcp_f32 v14, v13
    v_fma_f32 v15, -v14, v13, 1.0
    v_fmac_f32 v14, v15, v14""")
    rne_bf16_1(a, 14, 14)
    a("v_mul_f32 v8, v8, v14")
    rne_bf16_1(a, 8, 8)
    a("""v_lshlrev_b32 v40, 16, v40
    v_lshlrev_b32 v41, 16, v41
    v_add_f32 v8, v40, v8""")
    rne_bf16_1(a, 8, 8)
    a("""v_add_f32 v8, v41, v8
    v_cvt_pk_bf16_f32 v8, v8, v8
    s_mul_i32 s25, s23, 1280
    s_lshl_b32 s3, s2, 7
    s_add_u32 s25, s25, s3
    v_lshlrev_b32 v3, 1, v1
    v_add_u32 v3, s25, v3
    global_store_short v3, v8, s[4:5]""")
    a.label("K4_END")
    a("s_endpgm")

def gen_k5(a):
    a.raw(".globl k5_kernel\n.p2align 8\n.type k5_kernel,@function\nk5_kernel:")
    a("""s_cmp_ge_u32 s2, 10
    s_cbranch_scc1 K5_END
    s_load_dwordx2 s[6:7], s[0:1], 128
    s_load_dwordx2 s[12:13], s[0:1], 112""")
    wave_id(a, "s8")
    a("""v_and_b32 v1, 63, v0
    s_waitcnt lgkmcnt(0)""")
    ws_ptr(a, 26, 6, WIN_OFF)
    ws_ptr(a, 28, 6, PART_OFF)
    a("""s_lshl_b32 s3, s2, 8
    s_mul_i32 s9, s8, 61440
    s_add_u32 s9, s9, s3
    v_lshlrev_b32 v2, 2, v1
    v_add_u32 v2, s9, v2
    s_load_dword s22, s[26:27], 2560
    s_lshl_b32 s3, s2, 7
    v_lshlrev_b32 v3, 1, v1
    v_add_u32 v3, s3, v3
    global_load_ushort v40, v3, s[26:27]
    global_load_ushort v41, v3, s[26:27] offset:1280""")
    for k in range(24):
        a(f"global_load_dword v{8+k}, v2, s[28:29]")
        if k < 23: a("v_add_u32 v2, 2560, v2")
    a("s_waitcnt vmcnt(0)")
    for k in range(1, 24):
        a(f"v_add_f32 v8, v8, v{8+k}")
    a("""v_lshlrev_b32 v4, 2, v0
    ds_write_b32 v4, v8
    s_waitcnt lgkmcnt(0)
    s_barrier
    s_cmp_lg_u32 s8, 0
    s_cbranch_scc1 K5_END
    ds_read_b32 v9, v4 offset:256
    ds_read_b32 v10, v4 offset:512
    ds_read_b32 v11, v4 offset:768
    s_waitcnt lgkmcnt(0)
    v_add_f32 v8, v8, v9
    v_add_f32 v10, v10, v11
    v_add_f32 v8, v8, v10""")
    rne_bf16_1(a, 8, 8)
    a("""s_lshr_b32 s23, s22, 16
    s_and_b32 s24, s23, 0x8000
    s_xor_b32 s25, s23, 0x8000
    s_not_b32 s14, s23
    s_and_b32 s14, s14, 0xffff
    s_cmp_lg_u32 s24, 0
    s_cselect_b32 s23, s25, s14
    s_lshl_b32 s23, s23, 16
    v_mov_b32 v12, s23
    v_mul_f32 v13, 0xbfb8aa3b, v12
    v_exp_f32 v13, v13
    v_add_f32 v13, 1.0, v13
    v_rcp_f32 v14, v13
    v_fma_f32 v15, -v14, v13, 1.0
    v_fmac_f32 v14, v15, v14""")
    rne_bf16_1(a, 14, 14)
    a("v_mul_f32 v8, v8, v14")
    rne_bf16_1(a, 8, 8)
    a("""v_lshlrev_b32 v40, 16, v40
    v_lshlrev_b32 v41, 16, v41
    v_add_f32 v8, v40, v8""")
    rne_bf16_1(a, 8, 8)
    a("""v_add_f32 v8, v41, v8
    v_cvt_pk_bf16_f32 v8, v8, v8
    s_and_b32 s23, s22, 0xffff
    s_sub_u32 s23, 0xffff, s23
    s_mul_i32 s23, s23, 1280
    v_add_u32 v3, s23, v3
    global_store_short v3, v8, s[12:13]""")
    a.label("K5_END")
    a("s_endpgm")

def build(which):
    a = Asm()
    hdr = []; kds = []
    L = {"k1": f"; @launch kernel=k1_kernel grid=(896,1,1) block=(320,1,1) lds={KG_LDS}",
         "k2": f"; @launch kernel=k2_kernel grid=(640,1,1) block=(256,1,1) lds={K2_LDS}",
         "k3": "; @launch kernel=k3_kernel grid=(256,1,1) block=(320,1,1) lds=1024",
         "k4": f"; @launch kernel=k4_kernel grid=({NW4},1,1) block=(320,1,1) lds=2048",
         "k5": "; @launch kernel=k5_kernel grid=(10,1,1) block=(256,1,1) lds=1024"}
    for k in which: hdr.append(L[k])
    a.raw("\n".join(hdr))
    a.raw('.amdgcn_target "amdgcn-amd-amdhsa--gfx950"\n.text')
    F = {"k1": (gen_k1, 80), "k2": (gen_k2, 120), "k3": (gen_k3, 80), "k4": (gen_k4, 108), "k5": (gen_k5, 64)}
    for k in which:
        F[k][0](a); kds.append(kd(k + "_kernel", F[k][1]))
    a.raw('.section .rodata,"a"')
    for k in kds: a.raw(k)
    return a.text()

if __name__ == "__main__":
    out = sys.argv[1]
    which = sys.argv[2].split(",")
    open(out, "w").write(build(which))
```

```python
STAMP_OFF = 48 << 20
class Stamper:
    def __init__(self, a, kidx, on):
        self.a = a; self.k = kidx; self.on = on; self.n = 0
    def __call__(self):
        if not self.on: return
        i = self.n; self.n += 1
        self.a(f"s_memtime s[{64+2*i}:{65+2*i}]")
    def finish(self, wsreg, swave):
        if not self.on: return
        a = self.a
        off = STAMP_OFF + self.k * (4 << 20)
        a(f"""s_waitcnt lgkmcnt(0)
        s_add_u32 s98, s{wsreg}, {off}
        s_addc_u32 s99, s{wsreg+1}, 0
        s_lshl_b32 s96, s2, 3
        s_add_u32 s96, s96, {swave}
        s_lshl_b32 s96, s96, 7
        s_mov_b64 exec, 1
        v_mov_b32 v0, s96""")
        for i in range(self.n):
            a(f"""v_mov_b32 v2, s{64+2*i}
            v_mov_b32 v3, s{65+2*i}
            global_store_dwordx2 v0, v[2:3], s[98:99] offset:{8*i}""")
```

```python
from gen2 import *
FLAG_OFF = 0x540800
NOPK = os.environ.get('NOPK','') != ''
if NOPK:
    def pk_cmul_ops(z, x, y, t):
        return [f"v_mul_f32 v{t}, v{x+1}, v{y+1}",
                f"v_mul_f32 v{t+1}, v{x+1}, v{y}",
                f"v_fma_f32 v{z}, v{x}, v{y}, -v{t}",
                f"v_fma_f32 v{z+1}, v{x}, v{y+1}, v{t+1}"]
def gen_kA(a):
    a.raw(".globl ka_kernel\n.p2align 8\n.type ka_kernel,@function\nka_kernel:")
    st = Stamper(a, 1, STAMP)
    st()
    a("""s_cmp_ge_u32 s2, 896
    s_cbranch_scc1 KA_END
    s_load_dwordx2 s[6:7], s[0:1], 128
    s_load_dwordx2 s[60:61], s[0:1], 120
    s_cmp_ge_u32 s2, 256
    s_cbranch_scc1 KA_KGEN
    s_load_dwordx2 s[4:5], s[0:1], 0""")
    wave_id(a, "s8")
    a("""v_and_b32 v1, 63, v0
    s_mul_i32 s3, s2, 10240
    v_lshlrev_b32 v2, 2, v0
    v_add_u32 v2, s3, v2
    v_add_u32 v3, 5120, v2
    s_waitcnt lgkmcnt(0)""")
    for t in range(8):
        a(f"global_load_dword v{4+t}, v{2 + t//4}, s[4:5] offset:{(t%4)*1280}")
    st()
    a("s_waitcnt vmcnt(0)")
    st()
    for t in range(8):
        a(f"""v_lshlrev_b32 v{12+2*t}, 16, v{4+t}
        v_and_b32 v{13+2*t}, 0xffff0000, v{4+t}""")
    ln_block(a, 12, 28, 36, "s8", "v1", 0)
    st()
    for c in range(2):
        for k in range(4):
            a(f"v_cvt_pk_f16_f32 v{44+4*c+k}, v{12+4*k+c}, v{12+4*k+2+c}")
    a("""s_mul_i32 s3, s2, 10240
    v_lshlrev_b32 v2, 5, v0
    v_add_u32 v2, s3, v2
    global_store_dwordx4 v2, v[44:47], s[6:7] sc1
    global_store_dwordx4 v2, v[48:51], s[6:7] offset:16 sc1
    v_mov_b32 v52, 0
    global_load_dword v53, v52, s[60:61] sc1""")
    st()
    a("""s_waitcnt vmcnt(0)
    s_barrier""")
    ws_ptr(a, 14, 6, FLAG_OFF)
    ws_ptr(a, 10, 6, KEY_OFF)
    ws_ptr(a, 12, 6, PART_OFF)
    a("""s_cmp_lg_u32 s8, 0
    s_cbranch_scc1 KA_LNS
    s_mov_b32 s27, 0""")
    a.label("KA_LNEP")
    a("""v_readfirstlane_b32 s9, v53
    s_cmp_lg_u32 s9, 0
    s_cbranch_scc1 KA_LNGO
    s_add_u32 s27, s27, 1
    s_cmp_ge_u32 s27, 0x10000
    s_cbranch_scc1 KA_LNGO
    s_sleep 8
    global_load_dword v53, v52, s[60:61] sc1
    s_waitcnt vmcnt(0)
    s_branch KA_LNEP""")
    a.label("KA_LNGO")
    a("""v_mov_b32 v8, 0
    s_lshl_b32 s3, s2, 2
    v_mov_b32 v10, s3
    s_mov_b64 exec, 1
    global_store_dword v10, v53, s[14:15] sc1
    global_store_dword v10, v8, s[10:11]
    s_mov_b64 exec, -1""")
    a.label("KA_LNS")
    a("""s_mul_i32 s3, s2, 1920
    v_lshlrev_b32 v2, 3, v0
    v_add_u32 v2, s3, v2
    v_mov_b32 v4, -1
    v_mov_b32 v5, -1
    v_cmp_gt_u32 vcc, 240, v0
    s_and_saveexec_b64 s[30:31], vcc
    s_cbranch_execz KA_LNE
    global_store_dwordx2 v2, v[4:5], s[12:13]""")
    a.label("KA_LNE")
    st()
    if STAMP: a("s_waitcnt vmcnt(0)")
    st(); st(); st()
    st.finish(6, "s8")
    a("s_endpgm")
    st.n = 1
    a.label("KA_KGEN")
    a("""s_sub_u32 s9, s2, 256
    s_and_b32 s3, s9, 7
    s_mul_i32 s3, s3, 80
    s_lshr_b32 s9, s9, 3
    s_add_u32 s3, s3, s9
    s_load_dwordx4 s[12:15], s[0:1], 8
    s_load_dwordx4 s[16:19], s[0:1], 24
    s_load_dwordx4 s[20:23], s[0:1], 40
    s_load_dwordx4 s[56:59], s[0:1], 56
    s_load_dwordx4 s[48:51], s[0:1], 88
    s_load_dwordx2 s[52:53], s[0:1], 104""")
    wave_id(a, "s8")
    a("""v_and_b32 v1, 63, v0
    s_mul_i32 s26, s8, %d
    s_mul_i32 s9, s3, 384
    v_lshlrev_b32 v2, 1, v0
    v_add_u32 v2, s9, v2
    s_lshl_b32 s9, s3, 1
    v_mov_b32 v3, s9
    s_waitcnt lgkmcnt(0)
    s_and_b32 s9, s9, -4
    s_load_dword s62, s[58:59], s9
    s_cmp_ge_u32 s8, 3
    s_cbranch_scc1 KA_W34
    global_load_ushort v4, v2, s[12:13]
    global_load_ushort v5, v2, s[14:15]
    global_load_ushort v6, v2, s[16:17]
    global_load_ushort v7, v2, s[18:19]
    global_load_ushort v8, v2, s[20:21]
    global_load_ushort v9, v2, s[22:23]
    global_load_ushort v10, v3, s[56:57]
    s_mov_b32 s27, 0x3fb8aa3b
    s_mov_b32 s28, 0x32a57060
    s_mov_b32 s29, 0x3f317218
    s_waitcnt vmcnt(0)""" % KG_REG)
    st()
    for r in range(4, 11):
        a(f"v_lshlrev_b32 v{r}, 16, v{r}")
    a("""v_mul_f32 v11, s27, v10
    v_fma_f32 v12, v10, s27, -v11
    v_fma_f32 v12, v10, s28, v12
    v_exp_f32 v11, v11
    v_mul_f32 v12, s29, v12
    v_fma_f32 v10, v11, v12, v11""")
    rne_bf16_1(a, 10, 10)
    a("""v_mul_f32 v4, v10, v4
    v_mul_f32 v5, v10, v5
    v_mul_f32 v6, v10, v6
    v_mul_f32 v7, v10, v7""")
    cmul(a, 12, 13, 8, 9, 6, 7, 14)
    a("""v_sub_f32 v13, 0, v13
    v_mul_f32 v4, s27, v4
    v_mul_f32 v5, 0.15915494, v5""")
    def cexp_ops(dst, L, conj, tb):
        return [f"v_mul_f32 v{tb}, {hx(f2u(float(L)))}, v4",
                f"v_mul_f32 v{tb+1}, {hx(f2u(float(-L if conj else L)))}, v5",
                f"v_exp_f32 v{tb}, v{tb}",
                f"v_fract_f32 v{tb+1}, v{tb+1}",
                f"v_cos_f32 v{tb+2}, v{tb+1}",
                f"v_sin_f32 v{tb+3}, v{tb+1}",
                f"v_mul_f32 v{dst}, v{tb}, v{tb+2}",
                f"v_mul_f32 v{dst+1}, v{tb}, v{tb+3}"]
    def zipemit(*streams):
        n = max(len(x) for x in streams)
        for k in range(n):
            for x in streams:
                if k < len(x): a(x[k])
    PS, P8, P128, PX = 18, 20, 22, 24
    C0, C1, C2 = 26, 28, 30
    T0, T1 = 14, 16
    VB = 32
    ACC = 64
    VA = 8
    zipemit(cexp_ops(P8, 8, False, 32), cexp_ops(PS, 1, True, 36), cexp_ops(P128, 128, True, 40))
    a(f"""v_lshlrev_b32 v2, 2, v1
    v_add_u32 v2, s26, v2
    v_and_b32 v6, 15, v1
    v_lshrrev_b32 v7, 4, v1
    v_mul_u32_u24 v3, {KG_PITCH}, v6
    v_lshl_add_u32 v3, v7, 4, v3
    v_add_u32 v3, s26, v3""")
    wtog = [0]
    def wr_ops(row, reg):
        b = (8, 76)[wtog[0]]; wtog[0] ^= 1
        return [f"v_cvt_pk_bf16_f32 v{b}, v{reg}, v{reg+1}",
                f"v_lshlrev_b32 v{b+2}, 16, v{b}",
                f"v_and_b32 v{b+3}, 0xffff0000, v{b}",
                f"ds_write_b32 v2, v{b} offset:{row*KG_PITCH}",
                *([f"v_sub_f32 v{b+2}, v{reg}, v{b+2}", f"v_sub_f32 v{b+3}, v{reg+1}, v{b+3}"] if NOPK else [f"v_pk_add_f32 v[{b+2}:{b+3}], v[{reg}:{reg+1}], v[{b+2}:{b+3}] neg_lo:[0,1] neg_hi:[0,1]"]),
                f"v_cvt_pk_bf16_f32 v{b+1}, v{b+2}, v{b+3}",
                f"ds_write_b32 v2, v{b+1} offset:{row*KG_PITCH+288}"]
    a("""v_mov_b32 v26, 1.0
    v_mov_b32 v27, 0""")
    zipemit(pk_cmul_ops(PX, P8, P8, T0), wr_ops(0, C0), wr_ops(1, P8))
    ca, cb = PX, P8
    for j in range(2, 16, 2):
        ops = []
        if j == 2:
            na = PX
            s1 = []
        else:
            na = C0 if ca != C0 else C2
            s1 = pk_cmul_ops(na, ca, PX, T0)
        nb_ = C1 if cb != C1 else 62
        s2 = pk_cmul_ops(nb_, cb, PX, T1)
        zipemit(s1, s2)
        zipemit(wr_ops(j, na), wr_ops(j + 1, nb_))
        ca, cb = na, nb_
    st()
    a("s_waitcnt lgkmcnt(0)")
    for s_ in range(4):
        a(f"ds_read_b128 v[{VB+4*s_}:{VB+4*s_+3}], v3 offset:{64*s_}")
        a(f"ds_read_b128 v[{VB+16+4*s_}:{VB+16+4*s_+3}], v3 offset:{288+64*s_}")
    a("s_waitcnt lgkmcnt(0)")
    def mm(T):
        a("s_waitcnt lgkmcnt(0)")
        acc = f"v[{ACC+4*T}:{ACC+4*T+3}]"
        sets = ((8, 76), (24, 28))
        for half in range(2):
            for g in range(2):
                h, l = sets[g]
                a(f"ds_read_b128 v[{h}:{h+3}], v3 offset:{64*(2*half+g)}")
                a(f"ds_read_b128 v[{l}:{l+3}], v3 offset:{288+64*(2*half+g)}")
            for g in range(2):
                a(f"s_waitcnt lgkmcnt({2-2*g})")
                s_ = 2 * half + g
                h, l = sets[g]
                ah = f"v[{h}:{h+3}]"; al = f"v[{l}:{l+3}]"
                bh = f"v[{VB+4*s_}:{VB+4*s_+3}]"; bl = f"v[{VB+16+4*s_}:{VB+16+4*s_+3}]"
                a(f"v_mfma_f32_16x16x32_bf16 {acc}, {al}, {bh}, {'0' if s_ == 0 else acc}")
                a(f"v_mfma_f32_16x16x32_bf16 {acc}, {ah}, {bl}, {acc}")
                a(f"v_mfma_f32_16x16x32_bf16 {acc}, {ah}, {bh}, {acc}")
    def chain2(base, nsteps, row0, rowstep, leafrow):
        cur = base
        for e in range(nsteps):
            nxt = C0 if cur != C0 else C1
            s1 = pk_cmul_ops(nxt, cur, PS, T0) if e + 1 < nsteps else []
            s2 = pk_cmul_ops(C2, cur, P128, T1)
            zipemit(s2, s1, wr_ops(row0 + e * rowstep, cur))
            zipemit(wr_ops(row0 + e * rowstep + leafrow, C2))
            cur = nxt
    chain2(12, 8, 0, 1, 8)
    mm(0)
    st()
    zipemit(pk_cmul_ops(PX, P128, P128, T0), pk_cmul_ops(PS, PS, PS, T1))
    zipemit(pk_cmul_ops(20, 12, PX, T0))
    zipemit(pk_cmul_ops(PX, PX, PX, T1))
    chain2(20, 4, 0, 1, 4)
    zipemit(pk_cmul_ops(PS, PS, PS, T1), pk_cmul_ops(C0, 12, PX, T0))
    zipemit(pk_cmul_ops(C1, C0, PS, T1))
    ca, cb = C0, C1
    alt = {C0: C2, C2: C0, C1: 20, 20: C1}
    for i2 in range(4):
        s1 = pk_cmul_ops(alt[ca], ca, P128, T0) if i2 < 3 else []
        s2 = pk_cmul_ops(alt[cb], cb, P128, T1) if i2 < 3 else []
        zipemit(s1, s2)
        zipemit(wr_ops(8 + 2 * i2, ca), wr_ops(9 + 2 * i2, cb))
        ca, cb = alt[ca], alt[cb]
    mm(1)
    zipemit(cexp_ops(PX, 1024, True, 8), pk_cmul_ops(PS, P128, P128, T1))
    zipemit(pk_cmul_ops(C0, 12, PX, T0))
    zipemit(pk_cmul_ops(C1, C0, P128, T1))
    ca, cb = C0, C1
    for i2 in range(0, 9, 2):
        s1 = pk_cmul_ops(alt[ca], ca, PS, T0) if i2 + 2 <= 8 else []
        s2 = pk_cmul_ops(alt[cb], cb, PS, T1) if i2 + 3 <= 8 else []
        zipemit(s1, s2)
        zipemit(wr_ops(i2, ca), wr_ops(i2 + 1, cb) if i2 + 1 <= 8 else [])
        ca, cb = alt[ca], alt[cb]
    mm(2)
    st()
    a("""v_lshlrev_b32 v8, 2, v6
    v_lshl_add_u32 v8, v7, 8, v8
    v_add_u32 v8, s26, v8
    s_waitcnt lgkmcnt(0)""")
    for T in range(3):
        for v in range(4):
            a(f"ds_write_b32 v8, v{ACC+4*T+v} offset:{1024*T + 64*v}")
    a(f"v_max3_f32 v41, |v{ACC}|, |v{ACC+1}|, |v{ACC+2}|")
    for r in range(3, 11, 2):
        a(f"v_max3_f32 v41, v41, |v{ACC+r}|, |v{ACC+r+1}|")
    a(f"v_max_f32 v41, v41, |v{ACC+11}|")
    dpp_reduce(a, [41], op="v_max_f32")
    a(f"""s_lshl_b32 s9, s8, 2
    v_mov_b32 v42, s9
    s_mov_b32 exec_lo, 0
    s_mov_b32 exec_hi, 0x80000000
    ds_write_b32 v42, v41 offset:{KG_MAX}
    s_mov_b64 exec, -1
    s_branch KA_GATHER""")
    a.label("KA_W34")
    a("""s_cmp_eq_u32 s8, 4
    s_cbranch_scc1 KA_W4
    s_cmp_lg_u32 s2, 256
    s_cbranch_scc1 KA_GATHER
    s_memrealtime s[64:65]
    s_waitcnt lgkmcnt(0)
    s_or_b32 s64, s64, 1
    v_mov_b32 v52, 0
    v_mov_b32 v53, s64
    s_mov_b64 exec, 1
    global_store_dword v52, v53, s[60:61] sc1
    s_mov_b64 exec, -1
    s_branch KA_GATHER""")
    a.label("KA_W4")
    a("""v_mov_b32 v8, 0
    s_mov_b32 s27, 0""")
    a.label("KA_EPOLL")
    a("""s_sleep 32
    global_load_dword v9, v8, s[60:61] sc1
    s_waitcnt vmcnt(0)
    v_readfirstlane_b32 s28, v9
    s_cmp_lg_u32 s28, 0
    s_cbranch_scc1 KA_EPOK
    s_add_u32 s27, s27, 1
    s_cmp_lt_u32 s27, 0x10000
    s_cbranch_scc1 KA_EPOLL""")
    a.label("KA_EPOK")
    a("""s_barrier
    v_lshlrev_b32 v8, 4, v1
    s_mov_b32 s27, 0""")
    ws_ptr(a, 14, 6, FLAG_OFF)
    a.label("KA_POLL")
    a("""global_load_dwordx4 v[12:15], v8, s[14:15] sc1
    s_waitcnt vmcnt(0)
    v_xor_b32 v12, s28, v12
    v_xor_b32 v13, s28, v13
    v_xor_b32 v14, s28, v14
    v_xor_b32 v15, s28, v15
    v_or3_b32 v12, v12, v13, v14
    v_or_b32 v12, v12, v15
    v_cmp_ne_u32 vcc, 0, v12
    s_cmp_eq_u64 vcc, 0
    s_cbranch_scc1 KA_UGO
    s_add_u32 s27, s27, 1
    s_cmp_ge_u32 s27, 0x10000
    s_cbranch_scc1 KA_UGO
    s_sleep 16
    s_branch KA_POLL""")
    a.label("KA_UGO")
    a(f"""s_lshl_b32 s9, s3, 4
    v_mul_u32_u24 v16, 10240, v1
    v_add_u32 v16, s9, v16
    v_add_u32 v9, 655360, v16
    v_add_u32 v10, 1310720, v16
    v_add_u32 v11, 1966080, v16
    global_load_dwordx4 v[64:67], v16, s[6:7] sc1
    global_load_dwordx4 v[68:71], v9, s[6:7] sc1
    global_load_dwordx4 v[72:75], v10, s[6:7] sc1
    global_load_dwordx4 v[76:79], v11, s[6:7] sc1
    v_mov_b32 v56, 0
    v_mov_b32 v57, 0
    v_mov_b32 v58, 0
    v_mov_b32 v59, 0
    v_lshrrev_b32 v13, 2, v1
    v_mul_u32_u24 v14, 4160, v13
    v_mul_u32_u24 v13, 96, v13
    v_and_b32 v15, 3, v1
    v_lshl_add_u32 v13, v15, 4, v13
    v_lshl_add_u32 v14, v15, 4, v14
    s_barrier
    ds_write_b128 v8, v[56:59] offset:{K2_UB}
    v_cmp_gt_u32 vcc, 32, v1
    s_and_saveexec_b64 s[30:31], vcc
    ds_write_b128 v8, v[56:59] offset:{K2_UB+1024}
    v_cmp_gt_u32 vcc, 16, v1
    s_and_b64 exec, exec, vcc
    ds_write_b128 v14, v[56:59] offset:4096
    s_mov_b64 exec, -1
    s_waitcnt vmcnt(0)
    ds_write_b128 v13, v[64:67] offset:{K2_UB+1536}
    ds_write_b128 v13, v[68:71] offset:{K2_UB+1536+16*96}
    ds_write_b128 v13, v[72:75] offset:{K2_UB+1536+32*96}
    ds_write_b128 v13, v[76:79] offset:{K2_UB+1536+48*96}
    s_waitcnt lgkmcnt(0)
    s_barrier""")
    a("""s_and_b32 s54, s2, 7
    s_sub_u32 s55, s2, 256
    s_lshr_b32 s55, s55, 3
    s_mul_i32 s56, s55, 24576
    s_mul_i32 s57, s54, 384
    s_add_u32 s56, s56, s57
    v_mul_u32_u24 v16, 43691, v1
    v_lshrrev_b32 v16, 18, v16
    v_mul_u32_u24 v17, 6, v16
    v_sub_u32 v17, v1, v17
    v_mul_u32_u24 v16, 3072, v16
    v_lshl_add_u32 v16, v17, 6, v16
    v_add_u32 v16, s56, v16
    s_mul_i32 s57, s54, 245760
    s_mul_i32 s58, s55, 3072
    s_add_u32 s57, s57, s58
    v_lshlrev_b32 v17, 6, v1
    v_add_u32 v17, s57, v17
    v_cmp_gt_u32 vcc, 48, v1
    s_and_saveexec_b64 s[30:31], vcc
    global_load_dword v18, v16, s[48:49]
    global_load_dword v19, v16, s[50:51]
    global_load_dword v20, v17, s[52:53]
    s_mov_b64 exec, s[30:31]
    s_barrier
    s_barrier
    s_endpgm""")
    a.label("KA_GATHER")
    a("s_waitcnt lgkmcnt(0)")
    st()
    a(f"""s_barrier
    v_mov_b32 v42, 0
    ds_read_b128 v[44:47], v42 offset:{KG_MAX}
    v_lshlrev_b32 v2, 4, v0
    s_cmp_eq_u32 s8, 3
    s_cbranch_scc1 KA_P1A
    ds_read_b128 v[4:7], v2
    ds_read_b128 v[8:11], v2 offset:{KG_REG}
    ds_read_b128 v[12:15], v2 offset:{2*KG_REG}
    v_lshrrev_b32 v16, 2, v0
    v_and_b32 v17, 3, v0
    v_and_b32 v18, 7, v16
    v_lshrrev_b32 v19, 3, v16
    v_lshl_add_u32 v18, v19, 7, v18
    v_and_b32 v19, 3, v16
    v_bfe_u32 v20, v16, 2, 1
    v_lshlrev_b32 v19, 1, v19
    v_lshl_add_u32 v19, v20, 7, v19
    v_add_u32 v19, 256, v19
    v_and_b32 v20, 1, v16
    v_bfe_u32 v21, v16, 1, 2
    v_lshlrev_b32 v20, 2, v20
    v_lshl_add_u32 v20, v21, 7, v20
    v_add_u32 v20, 512, v20
    v_subrev_u32 v21, 32, v16
    v_lshlrev_b32 v21, 7, v21
    v_add_u32 v21, 1024, v21
    v_cmp_le_u32 vcc, 16, v16
    v_cndmask_b32 v18, v18, v19, vcc
    v_cmp_le_u32 vcc, 24, v16
    v_cndmask_b32 v18, v18, v20, vcc
    v_cmp_le_u32 vcc, 32, v16
    v_cndmask_b32 v18, v18, v21, vcc
    v_lshl_add_u32 v18, v17, 5, v18
    v_lshrrev_b32 v19, 3, v18
    v_add_lshl_u32 v18, v18, v19, 2""")
    a.label("KA_P1A")
    a("""s_waitcnt lgkmcnt(0)
    v_add_f32 v41, v44, v45
    v_add_f32 v41, v41, v46
    v_lshrrev_b32 v41, 23, v41
    v_sub_u32 v41, 268, v41
    v_max_i32 v41, 1, v41
    v_min_i32 v41, 253, v41
    v_sub_u32 v42, 254, v41
    v_lshlrev_b32 v41, 23, v41
    v_lshlrev_b32 v42, 23, v42
    v_readfirstlane_b32 s19, v42
    s_cmp_eq_u32 s8, 3
    s_cbranch_scc1 KA_P1DONE""")
    for k in range(4):
        a(f"""v_add_f32 v{4+k}, v{4+k}, v{8+k}
        v_add_f32 v{4+k}, v{4+k}, v{12+k}
        v_mul_f32 v{4+k}, v41, v{4+k}
        v_cvt_f16_f32 v{4+k}, v{4+k}""")
    a("""v_cmp_gt_u32 vcc, 41, v16
    s_and_saveexec_b64 s[30:31], vcc""")
    for k in range(4):
        a(f"ds_write_b32 v18, v{4+k} offset:{KG_TAB + 36*k}")
    a("s_mov_b64 exec, -1")
    a.label("KA_P1DONE")
    NV = 11
    a("""v_lshlrev_b32 v3, 3, v0
    v_sub_u32 v3, 2047, v3
    v_cvt_f32_u32 v3, v3
    s_mov_b32 s29, 0x05040100""")
    for s_ in range(0, NV + 1, 2):
        a(f"""v_add_f32 v4, {hx(f2u(-float(s_)))}, v3
        v_add_f32 v5, {hx(f2u(-float(s_+1)))}, v3
        v_cvt_pk_bf16_f32 v4, v4, v5
        v_and_b32 v5, 0xffff0000, v4
        v_lshlrev_b32 v4, 16, v4
        v_cvt_u32_f32 v5, v5
        v_cvt_u32_f32 v4, v4
        v_lshrrev_b32 v7, 3, v5
        v_lshrrev_b32 v6, 3, v4
        v_add_lshl_u32 v{9+s_}, v5, v7, 2
        v_add_lshl_u32 v{8+s_}, v4, v6, 2""")
    a("""s_waitcnt lgkmcnt(0)
    s_barrier""")
    for s_ in range(NV):
        a(f"ds_read_b32 v{20+s_}, v{8+s_} offset:{KG_TAB}")
    a("s_waitcnt lgkmcnt(0)")
    for c in range(4):
        for k in range(4):
            a(f"v_perm_b32 v{48+4*c+k}, v{21+c+2*k}, v{20+c+2*k}, s29")
    for c in range(4):
        a(f"ds_write_b128 v2, v[{48+4*c}:{51+4*c}] offset:{4160*c}")
    a(f"""s_cmp_lg_u32 s8, 3
    s_cbranch_scc1 KA_NOU
    v_mov_b32 v42, 0
    s_mov_b64 exec, 1
    ds_write_b16 v42, v42 offset:{4160*1 + 4080 + 14}
    ds_write_b32 v42, v42 offset:{4160*2 + 4080 + 12}
    ds_write_b16 v42, v42 offset:{4160*3 + 4080 + 10}
    ds_write_b32 v42, v42 offset:{4160*3 + 4080 + 12}
    s_mov_b64 exec, -1""")
    a.label("KA_NOU")
    st()
    a(f"""v_lshrrev_b32 v13, 2, v0
    v_mul_u32_u24 v15, 144, v13
    v_mul_u32_u24 v13, 96, v13
    v_and_b32 v14, 3, v0
    v_lshl_add_u32 v13, v14, 4, v13
    v_lshl_add_u32 v15, v14, 5, v15""")
    a(f"""v_and_b32 v2, 15, v1
    v_lshrrev_b32 v3, 4, v1
    v_and_b32 v4, 3, v1
    v_sub_u32 v4, 3, v4
    v_mul_u32_u24 v4, 4160, v4
    v_lshrrev_b32 v5, 2, v2
    v_lshlrev_b32 v6, 1, v3
    v_sub_u32 v5, v6, v5
    v_lshl_add_u32 v4, v5, 3, v4
    s_lshl_b32 s17, s8, 8
    s_sub_u32 s17, {4088 - (32 + 192 + 3072)}, s17
    v_add_u32 v4, s17, v4
    s_mul_i32 s17, s8, 384
    s_sub_u32 s17, {K2_UB + 13*96}, s17
    v_mul_u32_u24 v5, 96, v2
    v_lshl_add_u32 v5, v3, 4, v5
    v_add_u32 v5, s17, v5
    s_mul_i32 s17, s8, 9216
    v_mul_u32_u24 v6, 144, v2
    v_lshl_add_u32 v6, v3, 4, v6
    v_add_u32 v6, s17, v6""")
    CACC = 48
    a("""s_and_b32 s9, s3, 1
    s_lshl_b32 s9, s9, 4
    s_lshr_b32 s62, s62, s9
    s_lshl_b32 s62, s62, 16
    v_mov_b32 v12, s62""")
    ws_ptr(a, 14, 6, VT_OFF)
    a("""s_waitcnt lgkmcnt(0)
    s_barrier""")
    a.label("KA_CONV")
    FA = 16
    FB = {1: 36, 2: 40, 3: 44}
    FB0 = (32, 8)
    q = []
    def areg(p, j): return FA + 4 * (2 * (j & 1) + p)
    def rdA(dd, p, j):
        r = areg(p, j)
        off = (32-32*p) + 64*(3-dd) + 1024*(3-j)
        a(f"ds_read_b64 v[{r}:{r+1}], v4 offset:{off}"); q.append(("A", dd, p, j))
        a(f"ds_read_b64 v[{r+2}:{r+3}], v4 offset:{off+8}"); q.append(("A", dd, p, j))
    def breg(dd, m):
        return FB0[dd & 1] if m == 0 else FB[m]
    def rdB(dd, m):
        r = breg(dd, m)
        a(f"ds_read_b128 v[{r}:{r+3}], v5 offset:{(16*m + 3 - dd)*96}"); q.append(("B", dd, m))
    def need(tags):
        last = -1
        for k, t in enumerate(q):
            if t in tags: last = k
        if last >= 0:
            n = len(q) - 1 - last
            a(f"s_waitcnt lgkmcnt({min(n,15)})")
            if n <= 15: del q[:last+1]
            else: del q[:len(q)-15]
    rdB(0, 0); rdA(0, 0, 0); rdA(0, 1, 0); rdB(0, 1); rdB(0, 2); rdB(0, 3)
    rdA(0, 0, 1); rdA(0, 1, 1)
    for dd in range(4):
        for j in range(4):
            for nb in range(j, 4):
                m = nb - j
                for p in range(2):
                    need([("B", dd, m), ("A", dd, p, j)])
                    ra = areg(p, j); rb = breg(dd, m); rc = CACC + 4 * (2 * nb + p)
                    csrc = "0" if (dd == 0 and j == 0) else f"v[{rc}:{rc+3}]"
                    a(f"v_mfma_f32_16x16x32_f16 v[{rc}:{rc+3}], v[{ra}:{ra+3}], v[{rb}:{rb+3}], {csrc}")
            if j < 2:
                rdA(dd, 0, j + 2); rdA(dd, 1, j + 2)
            elif dd < 3:
                rdA(dd + 1, 0, j - 2); rdA(dd + 1, 1, j - 2)
            if dd < 3:
                if j == 0:
                    rdB(dd + 1, 0)
                if j < 3:
                    rdB(dd + 1, 3 - j)
    st()
    a(f"""ds_read_b128 v[8:11], v13 offset:{K2_UB+1536}
    s_waitcnt lgkmcnt(0)
    s_barrier""")
    for nb in range(4):
        for p in range(2):
            rc = CACC + 4 * (2 * nb + p)
            a(f"ds_write_b128 v6, v[{rc}:{rc+3}] offset:{2304*nb + 64*p}")
    a("""s_waitcnt lgkmcnt(0)
    s_barrier""")
    for w in range(4):
        a(f"ds_read_b128 v[{16+8*w}:{19+8*w}], v15 offset:{9216*w}")
        a(f"ds_read_b128 v[{20+8*w}:{23+8*w}], v15 offset:{9216*w+16}")
    for k in range(4):
        a(f"""v_cvt_f32_f16 v52, v{8+k}
        v_lshrrev_b32 v53, 16, v{8+k}
        v_cvt_f32_f16 v53, v53
        v_mul_f32 v52, v12, v52
        v_mul_f32 v53, v12, v53
        v_cvt_pk_bf16_f32 v{48+k}, v52, v53""")
    a("s_waitcnt lgkmcnt(0)")
    for k in range(8):
        a(f"""v_add_f32 v{16+k}, v{16+k}, v{24+k}
        v_add_f32 v{32+k}, v{32+k}, v{40+k}
        v_add_f32 v{16+k}, v{16+k}, v{32+k}
        v_mul_f32 v{16+k}, s19, v{16+k}""")
    for k in range(4):
        a(f"""v_cvt_pk_bf16_f32 v55, v{16+2*k}, v{17+2*k}
        v_lshlrev_b32 v52, 16, v{48+k}
        v_and_b32 v53, 0xffff0000, v{48+k}
        v_lshlrev_b32 v56, 16, v55
        v_and_b32 v57, 0xffff0000, v55
        v_add_f32 v52, v52, v56
        v_add_f32 v53, v53, v57
        v_cvt_pk_bf16_f32 v{60+k}, v52, v53""")
    a("""s_lshl_b32 s9, s3, 4
    v_mul_u32_u24 v2, 10240, v0
    v_add_u32 v3, s9, v2
    global_store_dwordx4 v3, v[60:63], s[14:15]""")
    if STAMP:
        a("s_waitcnt vmcnt(0)")
        st()
        st.n = 12
        st.finish(6, "s8")
    a.label("KA_END")
    a("s_endpgm")


def gen_kB(a):
    a.raw(".globl kb_kernel\n.p2align 8\n.type kb_kernel,@function\nkb_kernel:")
    st = Stamper(a, 3, STAMP)
    st()
    a(f"""s_cmp_ge_u32 s2, {256 + NW4}
    s_cbranch_scc1 KB_END
    s_cmp_ge_u32 s2, 256
    s_cbranch_scc1 KB_FFN
    s_load_dwordx2 s[6:7], s[0:1], 128
    s_load_dwordx2 s[4:5], s[0:1], 0
    s_load_dwordx2 s[10:11], s[0:1], 80
    s_load_dwordx2 s[12:13], s[0:1], 112""")
    wave_id(a, "s8")
    a("""v_and_b32 v1, 63, v0
    s_mul_i32 s3, s2, 10240
    v_lshlrev_b32 v2, 2, v0
    v_add_u32 v60, s3, v2
    v_add_u32 v61, 5120, v60
    s_waitcnt lgkmcnt(0)""")
    ws_ptr(a, 14, 6, VT_OFF)
    for t in range(8):
        a(f"global_load_dword v{4+t}, v{60 + t//4}, s[4:5] offset:{(t%4)*1280}")
    a("""v_lshlrev_b32 v3, 5, v0
    v_add_u32 v3, s3, v3
    global_load_dwordx4 v[44:47], v3, s[14:15]
    global_load_dwordx4 v[48:51], v3, s[14:15] offset:16
    global_load_dword v52, v2, s[10:11]""")
    a("s_waitcnt vmcnt(0)")
    st()
    for t in range(8):
        k = t // 2
        if t % 2 == 0:
            a(f"""v_lshlrev_b32 v36, 16, v{44+k}
            v_lshlrev_b32 v37, 16, v{48+k}""")
        else:
            a(f"""v_and_b32 v36, 0xffff0000, v{44+k}
            v_and_b32 v37, 0xffff0000, v{48+k}""")
        a(f"""v_lshlrev_b32 v38, 16, v{4+t}
        v_and_b32 v39, 0xffff0000, v{4+t}
        v_add_f32 v36, v36, v38
        v_add_f32 v37, v37, v39
        v_cvt_pk_bf16_f32 v{64+t}, v36, v37
        v_lshlrev_b32 v{12+2*t}, 16, v{64+t}
        v_and_b32 v{13+2*t}, 0xffff0000, v{64+t}""")
    ln_block(a, 12, 28, 36, "s8", "v1", 0)
    a("""v_lshlrev_b32 v53, 16, v52
    v_and_b32 v54, 0xffff0000, v52""")
    for t in range(8):
        x0, x1 = 12 + 2 * t, 13 + 2 * t
        a(f"""v_lshlrev_b32 v36, 16, v{64+t}
        v_and_b32 v37, 0xffff0000, v{64+t}
        v_add_f32 v36, v36, v{x0}
        v_add_f32 v37, v37, v{x1}
        v_cvt_pk_bf16_f32 v{4+t}, v36, v37
        v_mul_f32 v{28+t}, v53, v{x0}
        v_fmac_f32 v{28+t}, v54, v{x1}
        v_cvt_pk_bf16_f32 v{72+t}, v{x0}, v{x1}""")
    cross_wave_sum8(a, 28, 512, 36, 37, "s8", "v1")
    a("""v_cvt_pk_bf16_f32 v36, v36, v36
    v_and_b32 v36, 0xffff, v36
    v_bfe_i32 v37, v36, 15, 1
    v_xor_b32 v38, 0x8000, v36
    v_not_b32 v39, v36
    v_and_b32 v39, 0xffff, v39
    v_cmp_ne_u32 vcc, 0, v37
    v_cndmask_b32 v38, v38, v39, vcc
    v_lshlrev_b32 v38, 16, v38
    v_and_b32 v39, 7, v1
    s_lshl_b32 s3, s2, 3
    v_add_u32 v39, s3, v39
    v_sub_u32 v39, 0xffff, v39
    v_or_b32 v38, v38, v39""")
    for sh in (1, 2, 4):
        a(f"v_max_u32_dpp v38, v38, v38 row_shr:{sh} row_mask:0xf bank_mask:0xf bound_ctrl:0")
    a("""v_readlane_b32 s16, v38, 7
    s_and_b32 s17, s16, 7
    s_xor_b32 s17, s17, 7""")
    st()
    ws_ptr(a, 18, 6, KEY_OFF)
    ws_ptr(a, 20, 6, CAND_OFF)
    a("""s_mul_i32 s3, s2, 2560
    v_add_u32 v3, s3, v2""")
    for t in range(8):
        a(f"""s_cmp_eq_u32 s17, {t}
        s_cbranch_scc0 KB_SK{t}
        global_store_dword v3, v{72+t}, s[20:21] sc1
        global_store_dword v3, v{64+t}, s[20:21] offset:1280 sc1
        global_store_dword v{60 + t//4}, v{4+t}, s[12:13] offset:{(t%4)*1280} sc1
        s_waitcnt vmcnt(0)
        s_branch KB_SJ{t}""")
        a.label(f"KB_SK{t}")
        a(f"global_store_dword v{60 + t//4}, v{4+t}, s[12:13] offset:{(t%4)*1280}")
        a.label(f"KB_SJ{t}")
    a("s_barrier")
    st()
    a("""s_lshl_b32 s3, s2, 2
    v_mov_b32 v3, s3
    v_mov_b32 v4, s16
    v_cmp_eq_u32 vcc, 0, v0
    s_and_saveexec_b64 s[30:31], vcc
    s_cbranch_execz KB_END
    global_store_dword v3, v4, s[18:19] sc1""")
    if STAMP:
        a("s_waitcnt vmcnt(0)")
        st()
        st.finish(6, "s8")
    a("s_endpgm")
    st.n = 1
    a.label("KB_FFN")

    a(f"""s_sub_u32 s2, s2, 256
    s_load_dwordx2 s[6:7], s[0:1], 128
    s_load_dwordx4 s[12:15], s[0:1], 88
    s_load_dwordx2 s[16:17], s[0:1], 104
    s_load_dwordx2 s[4:5], s[0:1], 112
    s_load_dwordx2 s[10:11], s[0:1], 120""")
    wave_id(a, "s8")
    a("""v_and_b32 v1, 63, v0
    s_and_b32 s3, s2, 7
    s_mul_i32 s3, s3, 12
    s_lshr_b32 s9, s2, 3
    s_add_u32 s3, s3, s9
    v_and_b32 v2, 31, v1
    v_lshrrev_b32 v3, 5, v1
    s_lshl_b32 s9, s8, 5
    v_add_u32 v2, s9, v2
    v_mul_u32_u24 v4, 3072, v2
    v_lshl_add_u32 v4, v3, 4, v4
    s_lshl_b32 s9, s3, 5
    v_add_u32 v4, s9, v4
    s_waitcnt lgkmcnt(0)""")
    ws_ptr(a, 18, 6, KEY_OFF)
    ws_ptr(a, 20, 6, CAND_OFF)
    for it in range(4):
        if it > 0: a(f"v_add_u32 v{4+it}, {160*3072*it}, v4")
        a(f"global_load_dwordx4 v[{16+4*it}:{19+4*it}], v{4+it}, s[12:13]")
        a(f"global_load_dwordx4 v[{32+4*it}:{35+4*it}], v{4+it}, s[14:15]")
    a("""s_mul_i32 s9, s3, 20480
    v_lshlrev_b32 v8, 2, v0
    v_add_u32 v9, s9, v8""")
    for f in range(16):
        if f % 3 == 0 and f > 0: a(f"v_add_u32 v9, 3840, v9")
        a(f"global_load_dword v{48+f}, v9, s[16:17] offset:{(f%3)*1280}")
    a("""s_cmp_lg_u32 s8, 0
    s_cbranch_scc1 KB4_KW
    v_lshlrev_b32 v100, 4, v1
    s_mov_b32 s27, 0
    s_sleep 127""")
    a.label("KB4_KP")
    a("""global_load_dwordx4 v[104:107], v100, s[18:19] sc1
    s_waitcnt vmcnt(0)
    v_min_u32 v101, v104, v105
    v_min3_u32 v101, v101, v106, v107
    v_cmp_eq_u32 vcc, 0, v101
    s_cmp_eq_u64 vcc, 0
    s_cbranch_scc1 KB4_KG
    s_add_u32 s27, s27, 1
    s_cmp_ge_u32 s27, 0x10000
    s_cbranch_scc1 KB4_KG
    s_sleep 4
    s_branch KB4_KP""")
    a.label("KB4_KG")
    st()
    a("""v_max_u32 v104, v104, v105
    v_max_u32 v106, v106, v107
    v_max_u32 v104, v104, v106""")
    dpp_reduce(a, [104], op="v_max_u32")
    a("""v_mov_b32 v101, 1536
    s_mov_b32 exec_lo, 0
    s_mov_b32 exec_hi, 0x80000000
    ds_write_b32 v101, v104
    s_mov_b64 exec, -1
    s_waitcnt lgkmcnt(0)""")
    a.label("KB4_KW")
    a("""s_barrier
    v_mov_b32 v101, 1536
    ds_read_b32 v104, v101
    s_waitcnt lgkmcnt(0)
    v_readfirstlane_b32 s22, v104
    s_and_b32 s23, s22, 0xffff
    s_sub_u32 s23, 0xffff, s23
    s_lshr_b32 s24, s23, 3
    s_mul_i32 s24, s24, 2560
    v_lshlrev_b32 v10, 1, v2
    v_add_u32 v10, s24, v10""")
    for it in range(4):
        a(f"global_load_ushort v{64+it}, v10, s[20:21] offset:{320*it} sc1")
    a("s_waitcnt vmcnt(0)")
    st()
    for r in range(16):
        a(f"v_mov_b32 v{68+r}, 0")
    for it in range(4):
        a(f"v_lshlrev_b32 v{64+it}, 16, v{64+it}")
        for mat in range(2):
            for k in range(4):
                src = 16 + 16 * mat + 4 * it + k
                acc = 68 + 8 * mat + 2 * k
                a(f"""v_lshlrev_b32 v84, 16, v{src}
                v_and_b32 v85, 0xffff0000, v{src}
                v_fmac_f32 v{acc}, v{64+it}, v84
                v_fmac_f32 v{acc+1}, v{64+it}, v85""")
    dpp_reduce(a, list(range(68, 84)), full=False)
    a("""s_lshl_b32 s9, s8, 7
    v_lshlrev_b32 v86, 6, v3
    v_add_u32 v86, s9, v86
    s_mov_b32 exec_lo, 0x80000000
    s_mov_b32 exec_hi, 0x80000000""")
    for k in range(4):
        a(f"ds_write_b128 v86, v[{68+4*k}:{71+4*k}] offset:{16*k}")
    a("""s_mov_b64 exec, -1
    s_waitcnt lgkmcnt(0)
    s_barrier""")
    a("""v_and_b32 v86, 15, v1
    v_lshrrev_b32 v87, 3, v86
    v_and_b32 v86, 7, v86
    v_lshlrev_b32 v86, 2, v86
    v_lshl_add_u32 v86, v87, 6, v86""")
    for w in range(5):
        a(f"ds_read_b32 v{68+w}, v86 offset:{128*w}")
        a(f"ds_read_b32 v{76+w}, v86 offset:{128*w+32}")
    a("s_waitcnt lgkmcnt(0)")
    for w in range(1, 5):
        a(f"""v_add_f32 v68, v68, v{68+w}
        v_add_f32 v76, v76, v{76+w}""")
    rne_bf16_1(a, 68, 68)
    rne_bf16_1(a, 76, 76)
    a("""v_mul_f32 v69, 0xbfb8aa3b, v68
    v_exp_f32 v69, v69
    v_add_f32 v69, 1.0, v69
    v_rcp_f32 v70, v69
    v_mul_f32 v71, v68, v70
    v_fma_f32 v72, -v71, v69, v68
    v_fmac_f32 v71, v72, v70""")
    rne_bf16_1(a, 71, 71)
    a("v_mul_f32 v71, v71, v76")
    rne_bf16_1(a, 71, 71)
    for f in range(16):
        a(f"v_readlane_b32 s{32+f}, v71, {f}")
    a("""v_mov_b32 v84, 0
    v_mov_b32 v85, 0""")
    for f in range(16):
        a(f"""v_lshlrev_b32 v86, 16, v{48+f}
        v_and_b32 v87, 0xffff0000, v{48+f}
        v_fmac_f32 v84, s{32+f}, v86
        v_fmac_f32 v85, s{32+f}, v87""")
    ws_ptr(a, 28, 6, PART_OFF)
    a(f"""s_mul_i32 s9, s2, 2560
    v_lshlrev_b32 v8, 3, v0
    v_add_u32 v8, s9, v8
    global_store_dwordx2 v8, v[84:85], s[28:29] sc1""")
    st()
    a("""s_cmp_ge_u32 s2, 10
    s_cbranch_scc1 KB_END""")
    a("""s_lshl_b32 s3, s2, 7
    s_add_u32 s3, s3, s24
    v_lshlrev_b32 v3, 1, v1
    v_add_u32 v3, s3, v3
    global_load_ushort v40, v3, s[20:21] sc1
    global_load_ushort v41, v3, s[20:21] offset:1280 sc1
    s_lshl_b32 s3, s2, 8
    s_mul_i32 s9, s8, 2560
    s_add_u32 s9, s9, s3
    v_lshlrev_b32 v5, 2, v1
    v_add_u32 v5, s9, v5
    s_mov_b32 s27, 0""")
    a.label("KB4_PP")
    a("""v_mov_b32 v2, v5
    v_mov_b32 v67, 0""")
    for k in range(19):
        a(f"global_load_dword v{48+k}, v2, s[28:29] sc1")
        a("v_add_u32 v2, 12800, v2")
    a("""s_cmp_lg_u32 s8, 0
    s_cbranch_scc1 KB4_NO20
    global_load_dword v67, v2, s[28:29] sc1""")
    a.label("KB4_NO20")
    a("""s_waitcnt vmcnt(0)
    v_max_u32 v6, v48, v49""")
    for k in range(2, 20, 2):
        a(f"v_max3_u32 v6, v6, v{48+k}, v{49+k}")
    a("""v_cmp_eq_u32 vcc, -1, v6
    s_cmp_eq_u64 vcc, 0
    s_cbranch_scc1 KB4_PG
    s_add_u32 s27, s27, 1
    s_cmp_ge_u32 s27, 0x4000
    s_cbranch_scc1 KB4_PG
    s_sleep 4
    s_branch KB4_PP""")
    a.label("KB4_PG")
    st()
    for k in range(1, 20):
        a(f"v_add_f32 v48, v48, v{48+k}")
    a("""v_lshlrev_b32 v4, 2, v0
    ds_write_b32 v4, v48 offset:2048
    s_waitcnt lgkmcnt(0)
    s_barrier
    s_cmp_lg_u32 s8, 0
    s_cbranch_scc1 KB_END
    ds_read_b32 v9, v4 offset:2304
    ds_read_b32 v10, v4 offset:2560
    ds_read_b32 v11, v4 offset:2816
    ds_read_b32 v12, v4 offset:3072
    s_waitcnt lgkmcnt(0)
    v_add_f32 v8, v48, v9
    v_add_f32 v10, v10, v11
    v_add_f32 v8, v8, v10
    v_add_f32 v8, v8, v12""")
    rne_bf16_1(a, 8, 8)
    a("""s_lshr_b32 s25, s22, 16
    s_and_b32 s26, s25, 0x8000
    s_xor_b32 s27, s25, 0x8000
    s_not_b32 s14, s25
    s_and_b32 s14, s14, 0xffff
    s_cmp_lg_u32 s26, 0
    s_cselect_b32 s25, s27, s14
    s_lshl_b32 s25, s25, 16
    v_mov_b32 v12, s25
    v_mul_f32 v13, 0xbfb8aa3b, v12
    v_exp_f32 v13, v13
    v_add_f32 v13, 1.0, v13
    v_rcp_f32 v14, v13
    v_fma_f32 v15, -v14, v13, 1.0
    v_fmac_f32 v14, v15, v14""")
    rne_bf16_1(a, 14, 14)
    a("v_mul_f32 v8, v8, v14")
    rne_bf16_1(a, 8, 8)
    a("""v_lshlrev_b32 v40, 16, v40
    v_lshlrev_b32 v41, 16, v41
    v_add_f32 v8, v40, v8""")
    rne_bf16_1(a, 8, 8)
    a("""v_add_f32 v8, v41, v8
    v_cvt_pk_bf16_f32 v8, v8, v8
    s_mul_i32 s25, s23, 1280
    s_lshl_b32 s3, s2, 7
    s_add_u32 s25, s25, s3
    v_lshlrev_b32 v3, 1, v1
    v_add_u32 v3, s25, v3
    global_store_short v3, v8, s[4:5] sc1""")
    if STAMP:
        a("s_waitcnt vmcnt(0)")
        st()
        a("s_add_u32 s2, s2, 256")
        st.finish(6, "s8")
    a.label("KB_END")
    a("s_endpgm")


def build3(which):
    a = Asm()
    hdr = []; kds = []
    L = {"ka": f"; @launch kernel=ka_kernel grid=(896,1,1) block=(320,1,1) lds={KG_LDS}",
         "kb": f"; @launch kernel=kb_kernel grid=({256+NW4},1,1) block=(320,1,1) lds=4096",
         "k3": "; @launch kernel=k3_kernel grid=(256,1,1) block=(320,1,1) lds=1024",
         "k4": f"; @launch kernel=k4_kernel grid=({NW4},1,1) block=(320,1,1) lds=2048"}
    for k in which: hdr.append(L[k])
    a.raw("\n".join(hdr))
    a.raw('.amdgcn_target "amdgcn-amd-amdhsa--gfx950"\n.text')
    F = {"ka": (gen_kA, 80), "kb": (gen_kB, 108), "k3": (gen_k3, 80), "k4": (gen_k4, 108)}
    for k in which:
        F[k][0](a); kds.append(kd(k + "_kernel", F[k][1]))
    a.raw('.section .rodata,"a"')
    for k in kds: a.raw(k)
    return a.text()

if __name__ == "__main__":
    out = sys.argv[1]
    which = sys.argv[2].split(",")
    open(out, "w").write(build3(which))
```
